```python
import torch

def _softmax(x, axis=-1):
    return torch.softmax(x, dim=axis)
def _gelu(x):
    return torch.nn.functional.gelu(x, approximate="tanh")
def _silu(x):
    return torch.nn.functional.silu(x)
def _sigmoid(x):
    return torch.sigmoid(x)
def _layernorm(x, axis=-1, eps=1e-5):
    m = x.mean(dim=axis, keepdim=True)
    v = x.var(dim=axis, keepdim=True, unbiased=False)
    return (x - m) / torch.sqrt(v + eps)
def _scatter_add(tgt, idx, src, axis=0):
    return tgt.clone().index_add_(axis, idx, src)
def _segment_sum(src, seg, n):
    out = torch.zeros((n,) + src.shape[1:], dtype=src.dtype)
    return out.index_add_(0, seg, src)
def _pad(x, pw):
    flat = tuple(v for pair in reversed(pw) for v in pair)
    return torch.nn.functional.pad(x, flat)

kernel_name = 'standalone__gqa_block_cached__near_ridge'

def setup_inputs():

    _w = (lambda a: (lambda t: t.to(torch.bfloat16) if t.is_floating_point() else t)(torch.as_tensor(a)))
    B, Sq, D = 16, 64, 640
    Hq, Hkv, Sk, Dh = 32, 32, 512, 192
    assert Hq % Hkv == 0, (Hq, Hkv)
    return {
        "x": _w((lambda *s: torch.randn(*s, dtype=torch.bfloat16) * 0.8)(B, Sq, D)),
        "k_cache": _w((lambda *s: torch.randn(*s, dtype=torch.bfloat16) * 0.8)(B, Hkv, Sk, Dh)),
        "v_cache": _w((lambda *s: torch.randn(*s, dtype=torch.bfloat16) * 0.05)(B, Hkv, Sk, Dh)),
        "wq": _w((lambda *s: torch.randn(*s, dtype=torch.bfloat16) * 0.8)(D, Hq * Dh) * (D ** -0.5)),
        "wo": _w((lambda *s: torch.randn(*s, dtype=torch.bfloat16) * 0.05)(Hq * Dh, D) * ((Hq * Dh) ** -0.5)),
    }

def reference(x, k_cache, v_cache, wq, wo):
    B, Sq, D = x.shape
    Hq, Dh = 32, 192
    Hkv = k_cache.shape[1]
    rep = Hq // Hkv
    q = (lambda x, *d: x.permute(*d))((x @ wq).reshape(B, Sq, Hq, Dh), 0, 2, 1, 3)
    k = (lambda x, n, axis: torch.repeat_interleave(x, n, dim=axis))(k_cache, rep, axis=1)
    v = (lambda x, n, axis: torch.repeat_interleave(x, n, dim=axis))(v_cache, rep, axis=1)
    scores = torch.einsum("bhqd,bhkd->bhqk", q, k) * (Dh ** -0.5)
    p = _softmax(scores, axis=-1)
    o = torch.einsum("bhqk,bhkd->bhqd", p, v)
    return (lambda x, *d: x.permute(*d))(o, 0, 2, 1, 3).reshape(B, Sq, Hq * Dh) @ wo
```

```python
import re

def R(kind, lo, n=1):
    return [(kind, lo + i) for i in range(n)]

def rs(kind, lo, n=1):
    if n == 1: return f"{kind}{lo}"
    return f"{kind}[{lo}:{lo+n-1}]"

class I:
    __slots__ = ("text", "kind", "rd", "wr", "cx", "note")
    def __init__(self, text, kind, rd=(), wr=(), cx=None, note=None):
        self.text = text; self.kind = kind; self.rd = list(rd); self.wr = list(wr); self.cx = cx; self.note = note

def parse_op(op):
    op = op.strip()
    if op.startswith("-"): op = op[1:]
    m = re.fullmatch(r"([vas])(\d+)", op)
    if m: return [(m.group(1), int(m.group(2)))]
    m = re.fullmatch(r"([vas])\[(\d+):(\d+)\]", op)
    if m: return [(m.group(1), i) for i in range(int(m.group(2)), int(m.group(3)) + 1)]
    if op in ("vcc", "exec", "m0", "scc"): return [(op, 0)]
    return []

TRANS = ("v_exp_f32", "v_rcp_f32", "v_log_f32", "v_rsq_f32", "v_sqrt_f32")

class Asm:
    def __init__(self):
        self.ins = []
        self.lds_issued = 0
        self.lds_done = 0
        self.vm_issued = 0
        self.vm_done = 0
    def add(self, i): self.ins.append(i); return i
    def raw(self, text, kind="other"): return self.add(I(text, kind))
    def label(self, name): return self.add(I(name + ":", "label"))
    def comment(self, t): return self.add(I("; " + t, "comment"))
    def v(self, op, dst, *srcs, extra_rd=(), extra_wr=(), mods=""):
        rd = []
        for s in srcs: rd += parse_op(str(s))
        wr = parse_op(dst)
        kind = "trans" if op in TRANS else "valu"
        if op in ("v_fmac_f32", "v_dot2c_f32_bf16"): rd += wr
        if op.startswith("v_permlane"):
            kind = "permlane"; rd = parse_op(dst) + parse_op(srcs[0]); wr = rd
        if op.startswith("v_readfirstlane") or op.startswith("v_readlane"): kind = "readlane"
        text = f"{op} {dst}, " + ", ".join(str(s) for s in srcs) + (" " + mods if mods else "")
        return self.add(I(text, kind, rd + list(extra_rd), wr + list(extra_wr)))
    def s(self, op, dst, *srcs):
        rd = []
        for x in srcs: rd += parse_op(str(x))
        wr = parse_op(dst)
        if op.startswith("s_cmp"):
            rd = parse_op(str(dst)) + rd; wr = [("scc", 0)]
        text = f"{op} {dst}" + ("".join(", " + str(x) for x in srcs))
        return self.add(I(text, "salu", rd, wr))
    def mfma(self, d, a, b, c):
        rd_ab = parse_op(a) + parse_op(b)
        cc = parse_op(str(c))
        i = I(f"v_mfma_f32_16x16x32_bf16 {d}, {a}, {b}, {c}", "mfma", rd_ab + cc, parse_op(d))
        i.cx = cc
        return self.add(i)
    def ds_read(self, op, dst, addr, off=0):
        assert 0 <= off < 65536, off
        self.add(I(f"{op} {dst}, {addr}" + (f" offset:{off}" if off else ""), "ds_read", parse_op(addr), parse_op(dst)))
        self.lds_issued += 1
        return self.lds_issued
    def ds_write(self, op, addr, src, off=0):
        assert 0 <= off < 65536, off
        self.add(I(f"{op} {addr}, {src}" + (f" offset:{off}" if off else ""), "ds_write", parse_op(addr) + parse_op(src), []))
        self.lds_issued += 1
        return self.lds_issued
    def wait_lds(self, token):
        if token <= self.lds_done: return
        n = self.lds_issued - token
        assert n <= 15, f"lgkmcnt {n} too large"
        self.add(I(f"s_waitcnt lgkmcnt({n})", "wait"))
        self.lds_done = token
    def wait_lds_all(self):
        self.add(I("s_waitcnt lgkmcnt(0)", "wait")); self.lds_done = self.lds_issued
    def vm(self, text, kind, rd=(), wr=()):
        self.add(I(text, kind, rd, wr))
        self.vm_issued += 1
        return self.vm_issued
    def bload(self, op, dst, voff, srd, soff, off=0, flags=""):
        assert 0 <= off < 4096
        t = f"{op} {dst}, {voff}, {srd}, {soff} offen" + (f" offset:{off}" if off else "") + (" " + flags if flags else "")
        return self.vm(t, "vmem_load", parse_op(voff) + parse_op(srd) + parse_op(str(soff)), parse_op(dst))
    def bstore(self, op, src, voff, srd, soff, off=0, flags=""):
        assert 0 <= off < 4096
        t = f"{op} {src}, {voff}, {srd}, {soff} offen" + (f" offset:{off}" if off else "") + (" " + flags if flags else "")
        return self.vm(t, "vmem_store", parse_op(src) + parse_op(voff) + parse_op(srd) + parse_op(str(soff)), [])
    def dma(self, voff, srd, soff, off=0, flags=""):
        assert 0 <= off < 4096
        t = f"buffer_load_dwordx4 {voff}, {srd}, {soff} offen" + (f" offset:{off}" if off else "") + (" " + flags if flags else "") + " lds"
        return self.vm(t, "dma", parse_op(voff) + parse_op(srd) + parse_op(str(soff)) + [("m0", 0)], [])
    def wait_vm(self, token):
        if token <= self.vm_done: return
        n = self.vm_issued - token
        if n > 63:
            n = 63
        self.add(I(f"s_waitcnt vmcnt({n})", "wait"))
        self.vm_done = max(self.vm_done, self.vm_issued - n)
    def wait_vm_all(self):
        self.add(I("s_waitcnt vmcnt(0)", "wait")); self.vm_done = self.vm_issued
    def barrier(self): self.add(I("s_barrier", "barrier"))
    def nop(self, n):
        while n > 0:
            k = min(n, 16); self.add(I(f"s_nop {k-1}", "nop", cx=k)); n -= k

    def finalize(self):
        out = []
        VAL = ("valu", "trans", "permlane", "readlane")
        def states(i):
            if i.kind == "nop": return i.cx
            if i.kind in ("label", "comment"): return 0
            return 1
        def need(p, c):
            n = 0
            pw = set(p.wr);
            crd = set(c.rd); cwr = set(c.wr)
            vec = lambda S: {r for r in S if r[0] in "va"}
            if p.kind in VAL:
                raw = vec(pw) & crd
                if raw:
                    if c.kind == "mfma": n = max(n, 2)
                    if c.kind == "permlane": n = max(n, 2)
                    if c.kind == "readlane": n = max(n, 1)
                    if p.kind == "trans" and c.kind in VAL and c.kind != "trans": n = max(n, 1)
                    if p.kind == "trans" and c.kind not in VAL: n = max(n, 1)
                sw = {r for r in pw if r[0] in ("s", "vcc")} & crd
                if sw:
                    if c.kind in ("vmem_load", "vmem_store", "dma"): n = max(n, 5)
                    elif c.kind in VAL: n = max(n, 2)
                    elif c.kind == "salu": n = max(n, 1)
            if p.kind == "mfma":
                D = pw
                if c.kind == "mfma":
                    cc = set(c.cx)
                    ab = crd - cc if not (cc and cc <= crd and (cc & set(parse_ab(c)))) else crd
                    ab = set(parse_ab(c))
                    if D & ab: n = max(n, 8)
                    if D & cc:
                        if cc == D: n = max(n, 0)
                        else: n = max(n, 6)
                    elif D & cwr: n = max(n, 6)
                elif c.kind in VAL:
                    if D & (crd | cwr): n = max(n, 8)
                elif c.kind in ("vmem_store", "ds_write", "vmem_load", "ds_read", "dma"):
                    if D & (crd | cwr): n = max(n, 8)
                if c.kind in VAL and set(p.cx) & cwr: n = max(n, 3)
            if p.kind == "salu" and ("m0", 0) in pw and c.kind == "dma": n = max(n, 1)
            if p.kind in ("vmem_store", "ds_write") and c.kind in VAL:
                if vec(set(p.rd)) & cwr: n = max(n, 2)
            return n
        def parse_ab(c):
            ops = c.text.split(None, 1)[1].split(",")
            return parse_op(ops[1]) + parse_op(ops[2])
        for c in self.ins:
            if c.kind in ("label", "comment"):
                out.append(c); continue
            dist = 0; req = 0
            for p in reversed(out[-40:]):
                if p.kind == "label":
                    pass
                k = need(p, c)
                if k > dist: req = max(req, k - dist)
                dist += states(p)
                if dist >= 12: break
            while req > 0:
                k = min(req, 16); out.append(I(f"s_nop {k-1}", "nop", cx=k)); req -= k
            out.append(c)
        self.ins = out
    def text(self):
        o = []
        for i in self.ins:
            if i.kind == "label": o.append(i.text)
            else: o.append("  " + i.text)
        return "\n".join(o) + "\n"
```

```python
import sys, math
from asmlib import *

KN = "standalone__gqa_block_cached__near_ridge_kernel"
SLOT = 24576
NSLOT = 6
PF = 6
NRING = 8

V_KV = 1
V_WQ = 7
V_WO = 13
V_BK = 19; V_BV = 20; V_BQ0 = 21; V_BQ1 = 22; V_BO = 23
V_CUR = 24
V_M = 40; V_MC = 41
V_T = 42
V_LANE16 = 50
V_XOFF = 51
V_STAMP = 52
V_MISC = 54
V_Q = 56
V_P = 80
V_A = 96
V_S = 128
A_OUT = 0
A_X = 0
A_QACC = 80
A_O = 160
A_L = 208
A_OF = 212
A_ONES = 236

S_K = 20; S_V = 24; S_WQ = 28; S_WO = 32; S_X = 36; S_P = 40; S_F = 44; S_OUT = 48; S_DBG = 52
S_B = 56; S_J = 57; S_W = 58; S_LDSW = 59; S_C = 60; S_SOFF = 61; S_T0 = 62; S_T1 = 63
S_NONCE = 64
S_PB = 66
S_SAVE = 68
S_TM = 70
S_T2 = 72; S_T3 = 73

def srd(n): return f"s[{n}:{n+3}]"

class Step:
    def __init__(self, kind, h, t):
        self.kind = kind; self.h = h; self.t = t
        self.side = []
        self.pre = []
    def __repr__(self): return f"{self.kind}{self.h}.{self.t}"

def build_sequence():
    seq = []
    def add(k, h, t): seq.append(Step(k, h, t))
    for t in range(10): add("Qp", 0, t)
    for x in "K0 K1 Q0 K2 Q1 K3 K4 Q2 K5 Q3 K6 K7 Q4".split():
        add("QK" if x[0] == "K" else "Qp", 0 if x[0] == "K" else 1, int(x[1]))
    for x in "V0 Q5 V1 V2 Q6 V3 Q7 V4 V5 Q8 V6 Q9 V7".split():
        add("PV" if x[0] == "V" else "Qp", 0 if x[0] == "V" else 1, int(x[1]))
    for x in "K0 K1 O0 K2 O1 K3 K4 O2 K5 O3 K6 K7 O4".split():
        add("QK" if x[0] == "K" else "Op", 1 if x[0] == "K" else 0, int(x[1]))
    for x in "V0 O5 V1 O6 V2 O7 V3 O8 V4 O9 V5 V6 V7".split():
        add("PV" if x[0] == "V" else "Op", 1 if x[0] == "V" else 0, int(x[1]))
    for t in range(10): add("Op", 1, t)
    return seq

def gen(name, nt=True, stamps=False, dump=None):
    a = Asm()
    seq = build_sequence()
    NS = len(seq)
    ntf = "nt" if nt else ""
    a.s("s_cmp_ge_u32", "s2", 256)
    a.raw("s_cbranch_scc1 L_end", "branch")
    a.raw("s_load_dwordx16 s[4:19], s[0:1], 0", "smem")
    if stamps:
        a.raw(f"s_memtime s[{S_TM}:{S_TM+1}]", "smem")
    a.s("s_lshr_b32", f"s{S_B}", "s2", 4)
    a.s("s_and_b32", f"s{S_T0}", "s2", 7)
    a.s("s_lshl_b32", f"s{S_T0}", f"s{S_T0}", 1)
    a.s("s_bfe_u32", f"s{S_T1}", "s2", "0x10003")
    a.s("s_or_b32", f"s{S_J}", f"s{S_T0}", f"s{S_T1}")
    vl, vw, vi, vg, vrr, vcc_, vf, vt0, vt1, vt2, vt3 = [f"v{V_S+i}" for i in range(11)]
    a.v("v_and_b32", vl, 63, "v0")
    a.v("v_lshrrev_b32", vw, 6, "v0")
    a.v("v_readfirstlane_b32", f"s{S_W}", vw)
    a.v("v_and_b32", vi, 15, vl)
    a.v("v_lshrrev_b32", vg, 4, vl)
    a.v("v_lshrrev_b32", vrr, 2, vi)
    a.v("v_and_b32", vcc_, 3, vi)
    a.v("v_lshlrev_b32", f"v{V_LANE16}", 4, vl)
    a.s("s_mul_i32", f"s{S_LDSW}", f"s{S_W}", 6144)
    def f_of(dst, r, tmp):
        a.v("v_lshrrev_b32", dst, 3, r); a.v("v_and_b32", dst, 1, dst)
        a.v("v_and_b32", tmp, 2, r); a.v("v_or_b32", dst, dst, tmp)
        a.v("v_lshrrev_b32", tmp, 1, r); a.v("v_xor_b32", tmp, tmp, r); a.v("v_and_b32", tmp, 4, tmp)
        a.v("v_or_b32", dst, dst, tmp)
    for n in range(6):
        a.v("v_add_u32", vt0, n * 64, vl)
        a.v("v_mul_u32_u24", vt1, 2731, vt0); a.v("v_lshrrev_b32", vt1, 16, vt1)
        f_of(vf, vt1, vt2)
        a.v("v_xor_b32", vt0, vt0, vf)
        a.v("v_lshlrev_b32", vt2, 4, vt0)
        a.v("v_add_u32", vt2, f"s{S_LDSW}", vt2)
        a.v("v_subrev_u32", f"v{V_KV+n}", (n & 3) * 1024, vt2)
        a.v("v_mul_u32_u24", vt2, 24, vt1); a.v("v_sub_u32", vt2, vt0, vt2); a.v("v_lshlrev_b32", vt2, 4, vt2)
        a.v("v_lshlrev_b32", vt3, 4, vw); a.v("v_add_u32", vt3, vt3, vt1)
        a.v("v_mul_u32_u24", vt3, 12288, vt3)
        a.v("v_add_u32", vt2, vt2, vt3)
        a.v("v_subrev_u32", f"v{V_WQ+n}", (n & 3) * 1024, vt2)
        a.v("v_mul_u32_u24", vt3, 48, vw); a.v("v_lshrrev_b32", vt2, 3, vl); a.v("v_add_u32", vt3, vt3, vt2); a.v("v_add_u32", vt3, n * 8, vt3)
        a.v("v_and_b32", vt1, 15, vt3)
        f_of(vf, vt1, vt2)
        a.v("v_and_b32", vt2, 7, vl); a.v("v_xor_b32", vt2, vt2, vf); a.v("v_lshlrev_b32", vt2, 4, vt2)
        a.v("v_mul_u32_u24", vt3, 1280, vt3); a.v("v_add_u32", vt2, vt2, vt3)
        a.v("v_subrev_u32", f"v{V_WO+n}", (n & 3) * 1024, vt2)
    f_of(vf, vi, vt2)
    a.v("v_xor_b32", vt0, vg, vf); a.v("v_lshlrev_b32", vt0, 4, vt0)
    a.v("v_mul_u32_u24", vt1, 384, vi); a.v("v_add_u32", f"v{V_BK}", vt0, vt1)
    a.v("v_lshlrev_b32", vt3, 2, vg); a.v("v_add_u32", vt3, vt3, vrr)
    f_of(vf, vt3, vt2)
    a.v("v_lshrrev_b32", vt0, 1, vcc_); a.v("v_xor_b32", vt0, vt0, vf); a.v("v_lshlrev_b32", vt0, 4, vt0)
    a.v("v_and_b32", vt1, 1, vcc_); a.v("v_lshlrev_b32", vt1, 3, vt1); a.v("v_add_u32", vt0, vt0, vt1)
    a.v("v_mul_u32_u24", vt1, 384, vt3); a.v("v_add_u32", f"v{V_BV}", vt0, vt1)
    a.v("v_lshlrev_b32", vt1, 7, vt3); a.v("v_add_u32", f"v{V_BO}", vt0, vt1)
    for half, reg in ((0, V_BQ0), (1, V_BQ1)):
        a.v("v_lshlrev_b32", vt3, 3, vg); a.v("v_add_u32", vt3, vt3, vrr)
        if half: a.v("v_add_u32", vt3, 4, vt3)
        a.v("v_and_b32", vt1, 15, vt3)
        f_of(vf, vt1, vt2)
        a.v("v_lshrrev_b32", vt0, 1, vcc_); a.v("v_xor_b32", vt0, vt0, vf); a.v("v_lshlrev_b32", vt0, 4, vt0)
        a.v("v_and_b32", vt1, 1, vcc_); a.v("v_lshlrev_b32", vt1, 3, vt1); a.v("v_add_u32", vt0, vt0, vt1)
        a.v("v_mul_u32_u24", vt1, 384, vt3); a.v("v_add_u32", f"v{reg}", vt0, vt1)
    a.v("v_lshlrev_b32", vt0, 4, vw); a.v("v_add_u32", vt0, vt0, vi); a.v("v_mul_u32_u24", vt0, 1280, vt0)
    a.v("v_lshlrev_b32", vt1, 4, vg); a.v("v_add_u32", f"v{V_XOFF}", vt0, vt1)
    a.v("v_mov_b32", vt0, "0x3f803f80")
    for k in range(4): a.v("v_accvgpr_write_b32", f"a{A_ONES+k}", vt0)
    if stamps:
        a.v("v_mov_b32", f"v{V_STAMP}", 0); a.v("v_mov_b32", f"v{V_STAMP+1}", 0)
    a.raw("s_waitcnt lgkmcnt(0)", "wait")
    def mk_srd(dst, ptr, off_s_lo=None, off_s_hi=None, size=0):
        if off_s_lo is None:
            a.s("s_mov_b32", f"s{dst}", f"s{ptr}"); a.s("s_and_b32", f"s{dst+1}", f"s{ptr+1}", "0xffff")
        else:
            a.s("s_add_u32", f"s{dst}", f"s{ptr}", off_s_lo)
            a.s("s_addc_u32", f"s{dst+1}", f"s{ptr+1}", off_s_hi if off_s_hi is not None else 0)
            a.s("s_and_b32", f"s{dst+1}", f"s{dst+1}", "0xffff")
        a.s("s_mov_b32", f"s{dst+2}", size); a.s("s_mov_b32", f"s{dst+3}", "0x20000")
    T0, T1, T2, T3 = f"s{S_T0}", f"s{S_T1}", f"s{S_T2}", f"s{S_T3}"
    a.s("s_lshl_b32", T2, f"s{S_B}", 4); a.s("s_add_u32", T2, T2, f"s{S_J}")
    a.s("s_mul_i32", T0, T2, 393216); a.s("s_mul_hi_u32", T1, T2, 393216)
    mk_srd(S_K, 6, T0, T1, 393216); mk_srd(S_V, 8, T0, T1, 393216)
    a.s("s_mul_i32", T0, f"s{S_J}", 768)
    mk_srd(S_WQ, 10, T0, None, 0);
    a.s("s_sub_u32", f"s{S_WQ+2}", 7864320, T0)
    a.s("s_mul_i32", T0, f"s{S_J}", 491520); mk_srd(S_WO, 12, T0, None, 491520)
    a.s("s_mul_i32", T0, f"s{S_B}", 81920); mk_srd(S_X, 4, T0, None, 81920); mk_srd(S_OUT, 14, T0, None, 81920)
    a.s("s_mul_i32", T0, f"s{S_B}", 16 * 81920); mk_srd(S_P, 18, T0, None, 16 * 81920)
    a.s("s_lshl_b32", T0, f"s{S_B}", 8); a.s("s_add_u32", T0, T0, 0x2000000); mk_srd(S_F, 18, T0, None, 256)
    mk_srd(S_DBG, 16, None, None, 256)
    a.s("s_mov_b32", f"s{S_C}", hex(f32bits(math.log2(math.e) / math.sqrt(192.0))))
    a.s("s_mul_i32", f"s{S_PB}", f"s{S_J}", 81920); a.s("s_lshl_b32", T0, f"s{S_W}", 11); a.s("s_add_u32", f"s{S_PB}", f"s{S_PB}", T0)
    a.s("s_or_b32", T0, "s2", f"s{S_W}")
    a.s("s_cmp_lg_u32", T0, 0)
    a.raw("s_cbranch_scc1 L_nononce", "branch")
    a.raw(f"s_memrealtime s[{S_NONCE}:{S_NONCE+1}]", "smem")
    a.raw("s_waitcnt lgkmcnt(0)", "wait")
    a.s("s_or_b32", f"s{S_NONCE}", f"s{S_NONCE}", 1)
    a.v("v_mov_b32", vt1, f"s{S_NONCE}"); a.v("v_mov_b32", vt2, f"s{S_NONCE+1}"); a.v("v_mov_b32", vt3, 0)
    a.raw(f"buffer_store_dwordx2 v[{V_S+8}:{V_S+9}], {vt3}, {srd(S_DBG)}, 0 offen sc1", "vmem_store")
    a.raw("s_waitcnt vmcnt(0)", "wait")
    a.label("L_nononce")
    for ks in range(20):
        a.bload("buffer_load_dwordx4", f"a[{A_X+4*ks}:{A_X+4*ks+3}]", f"v{V_XOFF}", srd(S_X), 0, off=ks * 64)
    xtok = a.vm_issued

    tile_tok = {}
    def dma_items(i):
        st = seq[i]; sl = i % NSLOT
        if st.kind == "Qp": sr, vo, so, fl = S_WQ, V_WQ, st.t * 64 * 12288 + st.h * 384, ""
        elif st.kind == "QK": sr, vo, so, fl = S_K, V_KV, st.h * 196608 + st.t * SLOT, ntf
        elif st.kind == "PV": sr, vo, so, fl = S_V, V_KV, st.h * 196608 + st.t * SLOT, ntf
        else: sr, vo, so, fl = S_WO, V_WO, st.h * 245760 + st.t * 128, ""
        items = []
        def first():
            a.s("s_add_u32", "m0", f"s{S_LDSW}", sl * SLOT)
            a.s("s_mov_b32", f"s{S_SOFF}", so)
            a.dma(f"v{vo}", srd(sr), f"s{S_SOFF}", 0, fl)
        items.append(first)
        for n in (1, 2, 3):
            items.append(lambda n=n: a.dma(f"v{vo+n}", srd(sr), f"s{S_SOFF}", n * 1024, fl))
        def fifth():
            a.s("s_add_u32", "m0", f"s{S_LDSW}", sl * SLOT + 4096)
            a.dma(f"v{vo+4}", srd(sr), f"s{S_SOFF}", 0, fl)
        items.append(fifth)
        def last():
            a.dma(f"v{vo+5}", srd(sr), f"s{S_SOFF}", 1024, fl)
            tile_tok[i] = a.vm_issued
        items.append(last)
        return items

    def addr_items(i):
        st = seq[i]; sl = i % NSLOT; base = V_CUR + 8 * (i & 1); sb = sl * SLOT
        items = []
        if st.kind == "QK":
            items.append(lambda: a.v("v_add_u32", f"v{base}", sb, f"v{V_BK}"))
            items.append(lambda: a.v("v_xor_b32", f"v{base+1}", 64, f"v{base}"))
        elif st.kind in ("PV", "Op"):
            b = V_BV if st.kind == "PV" else V_BO
            items.append(lambda: a.v("v_add_u32", f"v{base}", sb, f"v{b}"))
            for tt in (1, 2, 3): items.append(lambda tt=tt: a.v("v_xor_b32", f"v{base+tt}", tt << 5, f"v{base}"))
        else:
            items.append(lambda: a.v("v_add_u32", f"v{base}", sb, f"v{V_BQ0}"))
            items.append(lambda: a.v("v_add_u32", f"v{base+4}", sb, f"v{V_BQ1}"))
            for tt in (1, 2, 3):
                items.append(lambda tt=tt: a.v("v_xor_b32", f"v{base+tt}", tt << 5, f"v{base}"))
                items.append(lambda tt=tt: a.v("v_xor_b32", f"v{base+4+tt}", tt << 5, f"v{base+4}"))
        return items

    def frag_spec(i, n):
        st = seq[i]; base = V_CUR + 8 * (i & 1)
        if st.kind == "QK":
            s_, kt = n // 4, n % 4
            reads = [("ds_read_b128", 0, 4, f"v{base + (s_ & 1)}", kt * 6144 + (s_ >> 1) * 128)]
            tile = st.t * 4 + kt
            D = f"v[{V_S+4*tile}:{V_S+4*tile+3}]"
            B = f"v[{V_Q+4*s_}:{V_Q+4*s_+3}]"
            C = "0" if s_ == 0 else D
        elif st.kind == "PV":
            ks, t = n // 12, n % 12
            reads = [("ds_read_b64_tr_b16", 2 * hf, 2, f"v{base + (t & 3)}", ks * 12288 + hf * 6144 + (t >> 2) * 128) for hf in (0, 1)]
            D = f"a[{A_O+4*t}:{A_O+4*t+3}]"
            pb = V_P + 8 * (st.t & 1) + 4 * ks
            B = f"v[{pb}:{pb+3}]"
            C = "0" if (st.t == 0 and ks == 0) else D
        elif st.kind == "Qp":
            ks, t = n // 12, n % 12
            reads = [("ds_read_b64_tr_b16", 2 * hf, 2, f"v{base + 4 * hf + (t & 3)}", ks * 12288 + (t >> 2) * 128) for hf in (0, 1)]
            D = f"a[{A_QACC+4*t}:{A_QACC+4*t+3}]"
            kk = st.t * 2 + ks
            B = f"a[{A_X+4*kk}:{A_X+4*kk+3}]"
            C = "0" if kk == 0 else D
        else:
            s_, u = n // 4, n % 4
            reads = [("ds_read_b64_tr_b16", 2 * hf, 2, f"v{base + u}", s_ * 4096 + hf * 2048) for hf in (0, 1)]
            tile = st.t * 4 + u
            D = f"a[{A_OUT+4*tile}:{A_OUT+4*tile+3}]"
            if st.h == 0: B = f"a[{A_OF+4*s_}:{A_OF+4*s_+3}]"
            else: B = f"v[{V_S+4*s_}:{V_S+4*s_+3}]"
            C = "0" if (st.h == 0 and s_ == 0) else D
        return reads, D, B, C

    frag_tok = {}
    def issue_frag(gidx):
        i, n = divmod(gidx, 24)
        if i >= NS: return
        reads, D, B, C = frag_spec(i, n)
        rb = V_A + 4 * (gidx % NRING)
        tok = None
        for (op, ro, cnt, addr, off) in reads:
            tok = a.ds_read(op, rs("v", rb + ro, cnt), addr, off)
        frag_tok[gidx] = tok

    def max_items(qk_t, first):
        items = []
        regs = [V_S + 16 * qk_t + k for k in range(16)]
        if first:
            items.append(lambda: a.v("v_max3_f32", f"v{V_M}", f"v{regs[0]}", f"v{regs[1]}", f"v{regs[2]}"))
            rest = regs[3:]
            for k in range(0, 12, 2):
                items.append(lambda k=k: a.v("v_max3_f32", f"v{V_M}", f"v{V_M}", f"v{rest[k]}", f"v{rest[k+1]}"))
            items.append(lambda: a.v("v_max_f32", f"v{V_M}", f"v{V_M}", f"v{rest[12]}"))
        else:
            for k in range(0, 16, 2):
                items.append(lambda k=k: a.v("v_max3_f32", f"v{V_M}", f"v{V_M}", f"v{regs[k]}", f"v{regs[k+1]}"))
        return items
    def maxfin_items():
        t0, t1 = f"v{V_T}", f"v{V_T+1}"
        def f1():
            a.v("v_mov_b32", t0, f"v{V_M}"); a.v("v_mov_b32", t1, f"v{V_M}")
            a.v("v_permlane32_swap_b32", t0, t1)
            a.v("v_max_f32", f"v{V_M}", t0, t1)
        def f2():
            a.v("v_mov_b32", t0, f"v{V_M}"); a.v("v_mov_b32", t1, f"v{V_M}")
            a.v("v_permlane16_swap_b32", t0, t1)
            a.v("v_max_f32", f"v{V_M}", t0, t1)
            a.v("v_mul_f32", f"v{V_MC}", f"s{S_C}", f"v{V_M}")
        return [f1, f2]
    def p_items(pv_t):
        items = []
        pb = V_P + 8 * (pv_t & 1)
        for k in range(0, 16, 2):
            r0 = V_S + 16 * pv_t + k
            def f(r0=r0, k=k):
                a.v("v_fma_f32", f"v{r0}", f"v{r0}", f"s{S_C}", f"-v{V_MC}")
                a.v("v_fma_f32", f"v{r0+1}", f"v{r0+1}", f"s{S_C}", f"-v{V_MC}")
                a.v("v_exp_f32", f"v{r0}", f"v{r0}")
                a.v("v_exp_f32", f"v{r0+1}", f"v{r0+1}")
            def g(r0=r0, k=k):
                a.v("v_cvt_pk_bf16_f32", f"v{pb + k // 2}", f"v{r0}", f"v{r0+1}")
            items.append(f); items.append(g)
        fs = items[0::2]; gs = items[1::2]
        out = []
        for k in range(8):
            out.append(fs[k])
            if k >= 1: out.append(gs[k-1])
        out.append(gs[7])
        return out
    def lsum_mfma(pv_t, ks):
        pb = V_P + 8 * (pv_t & 1) + 4 * ks
        D = f"a[{A_L}:{A_L+3}]"
        a.mfma(D, f"a[{A_ONES}:{A_ONES+3}]", f"v[{pb}:{pb+3}]", "0" if (pv_t == 0 and ks == 0) else D)
    def qconv_items():
        items = []
        for s_ in range(6):
            def f(s_=s_):
                q = V_Q + 4 * s_
                t = [f"v{V_T+k}" for k in range(8)]
                for k in range(8): a.v("v_accvgpr_read_b32", t[k], f"a{A_QACC + 8*s_ + k}")
                a.v("v_cvt_pk_bf16_f32", f"v{q}", t[0], t[1]); a.v("v_cvt_pk_bf16_f32", f"v{q+1}", t[2], t[3])
                a.v("v_cvt_pk_bf16_f32", f"v{q+2}", t[4], t[5]); a.v("v_cvt_pk_bf16_f32", f"v{q+3}", t[6], t[7])
            def g(s_=s_):
                q = V_Q + 4 * s_
                a.v("v_permlane32_swap_b32", f"v{q}", f"v{q+2}"); a.v("v_permlane32_swap_b32", f"v{q+1}", f"v{q+3}")
                a.v("v_permlane16_swap_b32", f"v{q}", f"v{q+2}"); a.v("v_permlane16_swap_b32", f"v{q+1}", f"v{q+3}")
            items.append(f); items.append(g)
        fs = items[0::2]; gs = items[1::2]; out = []
        for k in range(6):
            out.append(fs[k])
            if k >= 1: out.append(gs[k-1])
        out.append(gs[5])
        return out
    def onorm_items(h):
        items = []
        rinv = f"v{V_MISC}"
        def f0():
            a.v("v_accvgpr_read_b32", rinv, f"a{A_L}")
            a.v("v_rcp_f32", rinv, rinv)
        items.append(f0)
        for s_ in range(6):
            def f(s_=s_):
                t = [f"v{V_T+k}" for k in range(8)]
                for k in range(8): a.v("v_accvgpr_read_b32", t[k], f"a{A_O + 8*s_ + k}")
                for k in range(8): a.v("v_mul_f32", t[k], t[k], rinv)
                if h == 0:
                    for k in range(4): a.v("v_cvt_pk_bf16_f32", t[k], t[2*k], t[2*k+1])
                    for k in range(4): a.v("v_accvgpr_write_b32", f"a{A_OF + 4*s_ + k}", t[k])
                else:
                    for k in range(4): a.v("v_cvt_pk_bf16_f32", f"v{V_S + 4*s_ + k}", t[2*k], t[2*k+1])
            items.append(f)
        return items
    def pstore_items(t):
        items = []
        tb = V_S + 32 + 24 * (t & 1)
        def f1():
            for k in range(16): a.v("v_accvgpr_read_b32", f"v{tb+k}", f"a{A_OUT + 16*t + k}")
        def f2():
            for k in range(8): a.v("v_cvt_pk_bf16_f32", f"v{tb+16+k}", f"v{tb+2*k}", f"v{tb+2*k+1}")
        def f3():
            a.s("s_add_u32", f"s{S_T2}", f"s{S_PB}", t * 8192)
            a.bstore("buffer_store_dwordx4", f"v[{tb+16}:{tb+19}]", f"v{V_LANE16}", srd(S_P), f"s{S_T2}", 0, "sc1")
            a.bstore("buffer_store_dwordx4", f"v[{tb+20}:{tb+23}]", f"v{V_LANE16}", srd(S_P), f"s{S_T2}", 1024, "sc1")
        return [f1, f2, f3]

    idx = {repr(s): i for i, s in enumerate(seq)}
    for i, st in enumerate(seq):
        nxt = seq[i + 1] if i + 1 < NS else None
        if st.kind == "QK":
            tgt = nxt
            tgt.side += [(None, f) for f in max_items(st.t, st.t == 0)]
            if st.t == 7:
                tgt.side += [(None, f) for f in maxfin_items()]
                tgt.side += [(None, f) for f in p_items(0)]
        if st.kind == "PV" and st.t < 7:
            st.side += [(None, f) for f in p_items(st.t + 1)]
        if st.kind == "Qp" and st.t == 9:
            if st.h == 0:
                nxt.pre += qconv_items()
            else:
                nxt.side += [(None, f) for f in qconv_items()]
        if st.kind == "PV" and st.t == 7:
            if st.h == 0: nxt.side += [(None, f) for f in onorm_items(0)]
            else: nxt.pre += onorm_items(1)
        if st.kind == "Op" and st.h == 1 and nxt is not None:
            nxt.side += [(None, f) for f in pstore_items(st.t)]

    stamp_n = [0]
    def stamp():
        if not stamps: return
        k = stamp_n[0]; stamp_n[0] += 1
        a.raw(f"s_memtime s[{S_T2}:{S_T3}]", "smem")
        a.wait_lds_all()
        a.s("s_sub_u32", f"s{S_T2}", f"s{S_T2}", f"s{S_TM}")
        a.add(I(f"v_writelane_b32 v{V_STAMP + k // 64}, s{S_T2}, {k % 64}", "valu", [("s", S_T2)], [("v", V_STAMP + k // 64)]))

    for i in range(NSLOT - 1):
        for f in dma_items(i): f()
    for f in addr_items(0): f()
    a.wait_vm(tile_tok[0]); a.barrier()
    for g in range(PF): issue_frag(g)

    for i, st in enumerate(seq):
        a.comment(f"---- step {i}: {st}")
        stamp()
        if i + 1 < NS: a.wait_vm(tile_tok[i + 1])
        a.barrier()
        side = []
        if i + NSLOT - 1 < NS: side += dma_items(i + NSLOT - 1)
        addr = addr_items(i + 1) if i + 1 < NS else []
        for f in st.pre: f()
        queue = addr + side + [f for (_, f) in st.side]
        nq = len(queue); done = 0
        for n in range(24):
            g = i * 24 + n
            issue_frag(g + PF)
            a.wait_lds(frag_tok[g])
            reads, D, B, C = frag_spec(i, n)
            rb = V_A + 4 * (g % NRING)
            a.mfma(D, f"v[{rb}:{rb+3}]", B, C)
            if st.kind == "PV" and n in (0, 12): lsum_mfma(st.t, n // 12)
            target = math.ceil(nq * (n + 1) / 22)
            target = max(target, min(len(addr), (n + 1) * 2))
            while done < min(target, nq):
                queue[done](); done += 1
        assert done == nq
    for f in pstore_items(9): f()
    stamp()
    a.wait_vm_all()
    a.barrier()
    stamp()
    vt = [f"v{V_T+k}" for k in range(8)]
    a.s("s_cmp_lg_u32", f"s{S_W}", 0)
    a.raw("s_cbranch_scc1 L_sync_done", "branch")
    a.v("v_mov_b32", vt[0], 0)
    a.s("s_mov_b32", T1, 0)
    a.label("L_nonce")
    a.s("s_add_u32", T1, T1, 1)
    a.s("s_cmp_gt_u32", T1, 100000)
    a.raw("s_cbranch_scc1 L_sync_done", "branch")
    a.raw(f"buffer_load_dwordx2 v[{V_T+2}:{V_T+3}], {vt[0]}, {srd(S_DBG)}, 0 offen sc1", "vmem_load")
    a.raw("s_waitcnt vmcnt(0)", "wait")
    a.v("v_readfirstlane_b32", f"s{S_NONCE}", vt[2]); a.v("v_readfirstlane_b32", f"s{S_NONCE+1}", vt[3])
    a.nop(2)
    a.s("s_cmp_eq_u32", f"s{S_NONCE}", 0)
    a.raw("s_cbranch_scc1 L_nonce", "branch")
    a.s("s_lshl_b32", T0, f"s{S_J}", 3); a.v("v_mov_b32", vt[0], T0)
    a.raw(f"buffer_store_dwordx2 v[{V_T+2}:{V_T+3}], {vt[0]}, {srd(S_F)}, 0 offen sc1", "vmem_store")
    a.v("v_and_b32", vt[1], 15, "v0"); a.v("v_lshlrev_b32", vt[1], 3, vt[1])
    a.label("L_poll")
    a.s("s_add_u32", T1, T1, 1)
    a.s("s_cmp_gt_u32", T1, 200000)
    a.raw("s_cbranch_scc1 L_sync_done", "branch")
    a.raw(f"buffer_load_dwordx2 v[{V_T+4}:{V_T+5}], {vt[1]}, {srd(S_F)}, 0 offen sc1", "vmem_load")
    a.raw("s_waitcnt vmcnt(0)", "wait")
    a.add(I(f"v_cmp_eq_u32 vcc, {vt[4]}, {vt[2]}", "valu", [], [("vcc", 0)]))
    a.add(I(f"v_cmp_eq_u32 s[{S_SAVE}:{S_SAVE+1}], {vt[5]}, {vt[3]}", "valu", [], [("s", S_SAVE), ("s", S_SAVE+1)]))
    a.nop(2)
    a.s("s_and_b64", f"s[{S_SAVE}:{S_SAVE+1}]", f"s[{S_SAVE}:{S_SAVE+1}]", "vcc")
    a.raw(f"s_cmp_eq_u64 s[{S_SAVE}:{S_SAVE+1}], -1", "salu")
    a.raw("s_cbranch_scc0 L_poll", "branch")
    a.label("L_sync_done")
    a.barrier()
    stamp()
    a.s("s_mul_i32", T0, f"s{S_J}", 5); a.s("s_add_u32", T1, T0, f"s{S_W}")
    a.s("s_lshl_b32", T2, T1, 10)
    LB = V_S
    for p in range(16):
        a.s("s_add_u32", T3, T2, p * 81920)
        a.bload("buffer_load_dwordx4", f"v[{LB+4*p}:{LB+4*p+3}]", f"v{V_LANE16}", srd(S_P), T3, 0, "sc1")
    tok1 = a.vm_issued
    a.s("s_add_u32", T0, T0, 4)
    a.s("s_lshl_b32", T3, T0, 10)
    a.s("s_mul_i32", T2, f"s{S_W}", 4 * 81920); a.s("s_add_u32", T3, T3, T2)
    for p in range(4):
        a.bload("buffer_load_dwordx4", f"v[{LB+64+4*p}:{LB+64+4*p+3}]", f"v{V_LANE16}", srd(S_P), T3, 0, "sc1")
        if p < 3: a.s("s_add_u32", T3, T3, 81920)
    tok2 = a.vm_issued
    ACC = 208
    def accum(acc, r, first):
        for k in range(4):
            lo, hi = f"v{acc+2*k}", f"v{acc+2*k+1}"
            if first:
                a.v("v_lshlrev_b32", lo, 16, f"v{r+k}"); a.v("v_and_b32", hi, "0xffff0000", f"v{r+k}")
            else:
                a.v("v_lshlrev_b32", f"v{V_T}", 16, f"v{r+k}"); a.v("v_and_b32", f"v{V_T+1}", "0xffff0000", f"v{r+k}")
                a.v("v_add_f32", lo, lo, f"v{V_T}"); a.v("v_add_f32", hi, hi, f"v{V_T+1}")
    for p in range(16):
        a.wait_vm(tok1 - 15 + p)
        accum(ACC, LB + 4 * p, p == 0)
    for p in range(4):
        a.wait_vm(tok2 - 3 + p)
        accum(ACC + 8, LB + 64 + 4 * p, p == 0)
    a.v("v_lshlrev_b32", vt[2], 1, f"v{V_LANE16}")
    a.s("s_lshl_b32", T2, f"s{S_W}", 11); a.v("v_add_u32", vt[3], T2, vt[2])
    a.ds_write("ds_write_b128", vt[3], f"v[{ACC+8}:{ACC+11}]", 0); a.ds_write("ds_write_b128", vt[3], f"v[{ACC+12}:{ACC+15}]", 16)
    def out_store(cS, acc):
        a.s("s_lshr_b32", T2, cS, 3); a.s("s_lshl_b32", T2, T2, 7)
        a.s("s_and_b32", T3, cS, 1); a.s("s_lshl_b32", T3, T3, 6); a.s("s_add_u32", T2, T2, T3)
        a.s("s_bfe_u32", T3, cS, "0x20001"); a.s("s_mul_i32", T3, T3, 16 * 1280); a.s("s_add_u32", T2, T2, T3)
        a.v("v_and_b32", vt[4], 15, "v0"); a.v("v_mul_u32_u24", vt[4], 1280, vt[4])
        a.v("v_bfe_u32", vt[5], "v0", 4, 2); a.v("v_lshlrev_b32", vt[5], 3, vt[5]); a.v("v_add_u32", vt[4], vt[4], vt[5])
        for k in range(4): a.v("v_cvt_pk_bf16_f32", f"v{224+k}", f"v{acc+2*k}", f"v{acc+2*k+1}")
        a.bstore("buffer_store_dwordx2", "v[224:225]", vt[4], srd(S_OUT), T2, 0)
        a.bstore("buffer_store_dwordx2", "v[226:227]", vt[4], srd(S_OUT), T2, 32)
    out_store(T1, ACC)
    a.wait_lds_all()
    a.barrier()
    a.s("s_cmp_lg_u32", f"s{S_W}", 0)
    a.raw("s_cbranch_scc1 L_fin", "branch")
    for ww in range(4):
        a.ds_read("ds_read_b128", f"v[{LB+8*ww}:{LB+8*ww+3}]", vt[2], ww * 2048); a.ds_read("ds_read_b128", f"v[{LB+8*ww+4}:{LB+8*ww+7}]", vt[2], ww * 2048 + 16)
    a.wait_lds_all()
    for k in range(8):
        a.v("v_add_f32", f"v{LB+k}", f"v{LB+k}", f"v{LB+8+k}"); a.v("v_add_f32", f"v{LB+16+k}", f"v{LB+16+k}", f"v{LB+24+k}")
    for k in range(8): a.v("v_add_f32", f"v{LB+k}", f"v{LB+k}", f"v{LB+16+k}")
    a.nop(2)
    out_store(T0, LB)
    a.label("L_fin")
    if stamps:
        a.raw("s_waitcnt vmcnt(0)", "wait")
        stamp()
        a.s("s_lshl_b32", T0, "s2", 2); a.s("s_add_u32", T0, T0, f"s{S_W}"); a.s("s_lshl_b32", T0, T0, 9)
        a.s("s_add_u32", f"s{S_F}", "s18", 0x4000000); a.s("s_addc_u32", f"s{S_F+1}", "s19", 0); a.s("s_and_b32", f"s{S_F+1}", f"s{S_F+1}", "0xffff")
        a.s("s_mov_b32", f"s{S_F+2}", 1024 * 512)
        a.v("v_and_b32", vt[0], 63, "v0"); a.v("v_lshlrev_b32", vt[0], 2, vt[0])
        a.nop(4)
        a.raw(f"buffer_store_dword v{V_STAMP}, {vt[0]}, {srd(S_F)}, {T0} offen", "vmem_store")
        a.raw(f"buffer_store_dword v{V_STAMP+1}, {vt[0]}, {srd(S_F)}, {T0} offen offset:256", "vmem_store")
    a.label("L_end")
    a.raw("s_endpgm", "other")
    a.finalize()
    hdr = [f"; @launch grid=(256,1,1) block=(256,1,1) lds=163840",
           '.amdgcn_target "amdgcn-amd-amdhsa--gfx950"', ".text", f".globl {KN}", ".p2align 8", f".type {KN},@function", f"{KN}:"]
    ftr = ['.section .rodata,"a"', ".p2align 6", f".amdhsa_kernel {KN}",
           "  .amdhsa_next_free_vgpr 512", "  .amdhsa_next_free_sgpr 96", "  .amdhsa_accum_offset 256",
           "  .amdhsa_group_segment_fixed_size 0", "  .amdhsa_kernarg_size 64", "  .amdhsa_user_sgpr_count 2",
           "  .amdhsa_user_sgpr_kernarg_segment_ptr 1", "  .amdhsa_system_sgpr_workgroup_id_x 1", ".end_amdhsa_kernel"]
    open(name, "w").write("\n".join(hdr) + "\n" + a.text() + "\n".join(ftr) + "\n")
    print(name, "instrs:", len(a.ins), "steps:", NS, "stamps:", stamp_n[0])

import struct
def f32bits(x): return struct.unpack("<I", struct.pack("<f", x))[0]

if __name__ == "__main__":
    gen("v1.s", nt=True, stamps=False)
    gen("v1_st.s", nt=True, stamps=True)
```

```python
import re

def R(kind, lo, n=1):
    return [(kind, lo + i) for i in range(n)]

def rs(kind, lo, n=1):
    if n == 1: return f"{kind}{lo}"
    return f"{kind}[{lo}:{lo+n-1}]"

class I:
    __slots__ = ("text", "kind", "rd", "wr", "cx", "note", "blk")
    def __init__(self, text, kind, rd=(), wr=(), cx=None, note=None):
        self.text = text; self.kind = kind; self.rd = list(rd); self.wr = list(wr); self.cx = cx; self.note = note; self.blk = None

def parse_op(op):
    op = op.strip()
    if op.startswith("-"): op = op[1:]
    m = re.fullmatch(r"([vas])(\d+)", op)
    if m: return [(m.group(1), int(m.group(2)))]
    m = re.fullmatch(r"([vas])\[(\d+):(\d+)\]", op)
    if m: return [(m.group(1), i) for i in range(int(m.group(2)), int(m.group(3)) + 1)]
    if op in ("vcc", "exec", "m0", "scc"): return [(op, 0)]
    return []

TRANS = ("v_exp_f32", "v_rcp_f32", "v_log_f32", "v_rsq_f32", "v_sqrt_f32")

class Asm:
    def __init__(self):
        self.ins = []
        self.lds_issued = 0
        self.lds_done = 0
        self.vm_issued = 0
        self.vm_done = 0
        self.role = None
        self.rvi = [0, 0]; self.rvd = [0, 0]
        self.nlab = 0
    def add(self, i):
        i.blk = getattr(self, '_blk', None)
        self.ins.append(i); return i
    def raw(self, text, kind="other"): return self.add(I(text, kind))
    def label(self, name): return self.add(I(name + ":", "label"))
    def comment(self, t): return self.add(I("; " + t, "comment"))
    def v(self, op, dst, *srcs, extra_rd=(), extra_wr=(), mods=""):
        rd = []
        for s in srcs: rd += parse_op(str(s))
        wr = parse_op(dst)
        kind = "trans" if op in TRANS else "valu"
        if op in ("v_fmac_f32", "v_dot2c_f32_bf16"): rd += wr
        if op.startswith("v_permlane"):
            kind = "permlane"; rd = parse_op(dst) + parse_op(srcs[0]); wr = rd
        if op.startswith("v_readfirstlane") or op.startswith("v_readlane"): kind = "readlane"
        text = f"{op} {dst}, " + ", ".join(str(s) for s in srcs) + (" " + mods if mods else "")
        return self.add(I(text, kind, rd + list(extra_rd), wr + list(extra_wr)))
    def s(self, op, dst, *srcs):
        rd = []
        for x in srcs: rd += parse_op(str(x))
        wr = parse_op(dst)
        if op.startswith("s_cmp"):
            rd = parse_op(str(dst)) + rd; wr = [("scc", 0)]
        text = f"{op} {dst}" + ("".join(", " + str(x) for x in srcs))
        return self.add(I(text, "salu", rd, wr))
    def mfma(self, d, a, b, c, shape="16x16x32"):
        rd_ab = parse_op(a) + parse_op(b)
        cc = parse_op(str(c))
        i = I(f"v_mfma_f32_{shape}_bf16 {d}, {a}, {b}, {c}", "mfma", rd_ab + cc, parse_op(d))
        i.cx = cc
        i.note = 4 if shape == "16x16x32" else 8
        return self.add(i)
    def ds_read(self, op, dst, addr, off=0):
        assert 0 <= off < 65536, off
        self.add(I(f"{op} {dst}, {addr}" + (f" offset:{off}" if off else ""), "ds_read", parse_op(addr), parse_op(dst)))
        self.lds_issued += 1
        return self.lds_issued
    def ds_write(self, op, addr, src, off=0):
        assert 0 <= off < 65536, off
        self.add(I(f"{op} {addr}, {src}" + (f" offset:{off}" if off else ""), "ds_write", parse_op(addr) + parse_op(src), []))
        self.lds_issued += 1
        return self.lds_issued
    def wait_lds(self, token):
        if token <= self.lds_done: return
        n = self.lds_issued - token
        n = min(n, 15)
        self.add(I(f"s_waitcnt lgkmcnt({n})", "wait"))
        self.lds_done = max(token, self.lds_issued - n)
    def wait_lds_all(self):
        self.add(I("s_waitcnt lgkmcnt(0)", "wait")); self.lds_done = self.lds_issued
    def vm(self, text, kind, rd=(), wr=()):
        self.add(I(text, kind, rd, wr))
        self.vm_issued += 1
        for r in (0, 1):
            if self.role is None or self.role == r: self.rvi[r] += 1
        return self.vm_issued
    def bload(self, op, dst, voff, srd, soff, off=0, flags=""):
        assert 0 <= off < 4096
        t = f"{op} {dst}, {voff}, {srd}, {soff} offen" + (f" offset:{off}" if off else "") + (" " + flags if flags else "")
        return self.vm(t, "vmem_load", parse_op(voff) + parse_op(srd) + parse_op(str(soff)), parse_op(dst))
    def bstore(self, op, src, voff, srd, soff, off=0, flags=""):
        assert 0 <= off < 4096
        t = f"{op} {src}, {voff}, {srd}, {soff} offen" + (f" offset:{off}" if off else "") + (" " + flags if flags else "")
        return self.vm(t, "vmem_store", parse_op(src) + parse_op(voff) + parse_op(srd) + parse_op(str(soff)), [])
    def dma(self, voff, srd, soff, off=0, flags=""):
        assert 0 <= off < 4096
        t = f"buffer_load_dwordx4 {voff}, {srd}, {soff} offen" + (f" offset:{off}" if off else "") + (" " + flags if flags else "") + " lds"
        return self.vm(t, "dma", parse_op(voff) + parse_op(srd) + parse_op(str(soff)) + [("m0", 0)], [])
    def wait_vm(self, token):
        if token <= self.vm_done: return
        n = self.vm_issued - token
        if n > 63:
            n = 63
        self.add(I(f"s_waitcnt vmcnt({n})", "wait"))
        self.vm_done = max(self.vm_done, self.vm_issued - n)
    def wait_vm_all(self):
        self.add(I("s_waitcnt vmcnt(0)", "wait")); self.vm_done = self.vm_issued
        self.rvd = list(self.rvi)
    def rtok(self): return tuple(self.rvi)
    def role_begin(self, r):
        self.nlab += 1; self._rl = f"L_r{self.nlab}"
        self.add(I(f"s_cbranch_{'vccnz' if r == 0 else 'vccz'} {self._rl}", "branch"))
        self.role = r; self._blk = self.nlab
    def role_end(self):
        self._blk = None
        self.add(I(self._rl + ":", "label")); self.role = None
    def wait_role(self, r, token):
        if token <= self.rvd[r]: return
        n = min(self.rvi[r] - token, 63)
        self.role_begin(r)
        self.add(I(f"s_waitcnt vmcnt({n})", "wait"))
        self.role_end()
        self.rvd[r] = max(self.rvd[r], self.rvi[r] - n)
    def wait_both(self, tok):
        n0 = self.rvi[0] - tok[0]; n1 = self.rvi[1] - tok[1]
        if tok[0] <= self.rvd[0] and tok[1] <= self.rvd[1]: return
        n = min(n0, n1, 63)
        self.add(I(f"s_waitcnt vmcnt({n})", "wait"))
        for r in (0, 1): self.rvd[r] = max(self.rvd[r], self.rvi[r] - n)
    def barrier(self): self.add(I("s_barrier", "barrier"))
    def nop(self, n):
        while n > 0:
            k = min(n, 16); self.add(I(f"s_nop {k-1}", "nop", cx=k)); n -= k

    def finalize(self):
        out = []
        VAL = ("valu", "trans", "permlane", "readlane")
        def states(i):
            if i.kind == "nop": return i.cx
            if i.kind in ("label", "comment"): return 0
            return 1
        def need(p, c):
            n = 0
            pw = set(p.wr);
            crd = set(c.rd); cwr = set(c.wr)
            vec = lambda S: {r for r in S if r[0] in "va"}
            if p.kind in VAL:
                raw = vec(pw) & crd
                if raw:
                    if c.kind == "mfma": n = max(n, 2)
                    if c.kind == "permlane": n = max(n, 2)
                    if c.kind == "readlane": n = max(n, 1)
                    if p.kind == "trans" and c.kind in VAL and c.kind != "trans": n = max(n, 1)
                    if p.kind == "trans" and c.kind not in VAL: n = max(n, 1)
                sw = {r for r in pw if r[0] in ("s", "vcc")} & crd
                if sw:
                    if c.kind in ("vmem_load", "vmem_store", "dma"): n = max(n, 5)
                    elif c.kind in VAL: n = max(n, 2)
                    elif c.kind == "salu": n = max(n, 1)
            if p.kind == "mfma":
                D = pw
                P8 = (p.note == 8)
                W_AB, W_OV, W_WAR = (12, 10, 7) if P8 else (8, 6, 3)
                if c.kind == "mfma":
                    cc = set(c.cx)
                    ab = crd - cc if not (cc and cc <= crd and (cc & set(parse_ab(c)))) else crd
                    ab = set(parse_ab(c))
                    if D & ab: n = max(n, W_AB)
                    if D & cc:
                        if cc == D: n = max(n, 0)
                        else: n = max(n, W_OV)
                    elif D & cwr: n = max(n, W_OV)
                elif c.kind in VAL:
                    if D & (crd | cwr): n = max(n, W_AB)
                elif c.kind in ("vmem_store", "ds_write", "vmem_load", "ds_read", "dma"):
                    if D & (crd | cwr): n = max(n, W_AB)
                if c.kind in VAL and set(p.cx) & cwr: n = max(n, W_WAR)
            if p.kind == "salu" and ("m0", 0) in pw and c.kind == "dma": n = max(n, 1)
            if p.kind in ("vmem_store", "ds_write") and c.kind in VAL:
                if vec(set(p.rd)) & cwr: n = max(n, 2)
            return n
        def parse_ab(c):
            ops = c.text.split(None, 1)[1].split(",")
            return parse_op(ops[1]) + parse_op(ops[2])
        for c in self.ins:
            if c.kind in ("label", "comment"):
                out.append(c); continue
            dist = 0; req = 0
            for p in reversed(out[-60:]):
                if p.kind == "label":
                    pass
                k = need(p, c)
                if k > dist: req = max(req, k - dist)
                dist += states(p) if (p.blk is None or p.blk == c.blk) else 0
                if dist >= 16: break
            while req > 0:
                k = min(req, 16); nn = I(f"s_nop {k-1}", "nop", cx=k); nn.blk = c.blk; out.append(nn); req -= k
            out.append(c)
        self.ins = out
    def text(self):
        o = []
        for i in self.ins:
            if i.kind == "label": o.append(i.text)
            else: o.append("  " + i.text)
        return "\n".join(o) + "\n"
```

```python
import sys, math, struct
from asmlib import *

KN = "standalone__gqa_block_cached__near_ridge_kernel"
UNIT = 2048
NUNIT = 80
def f32bits(x): return struct.unpack("<I", struct.pack("<f", x))[0]

V_KV = 1; V_WQ = 7; V_E = 13; V_O = 14
V_BK = 15; V_BV = 16; V_BQ = 17; V_BX = 18; V_BO = 19
V_W = 20
V_M = 28; V_MC = 29; V_L = 30; V_RINV = 31
V_T = 32
V_L16 = 48
V_XA = 49
V_ST = 52
V_DUM = 54; V_XP = 55
V_A = 56; NRING = 6
V_Q = 80
V_S = 128
A_OUT = 0; A_X = 0
A_QACC = 160; A_OF = 160
def A_O(h): return 0 if h == 0 else 160

S_K = 20; S_V = 24; S_WQ = 28; S_WO = 32; S_X = 36; S_P = 40; S_F = 44; S_OUT = 48; S_DBG = 52
S_B = 56; S_J = 57; S_W = 58; S_C = 60; S_SOFF = 61; S_T0 = 62; S_T1 = 63
S_NONCE = 64; S_PB = 66; S_SAVE = 68; S_TM = 70; S_T2 = 72; S_T3 = 73
S_RH128 = 74; S_PVB = 75; S_CP = 76; S_PVC = 81
S_ROT = 84
S_LR = 82; S_LA = 83
S_QR = 85; S_QA = 86
S_OR = 87; S_OA = 88
S_XL = 89; S_XG = 90
S_R8 = 91
S_ST = 94
def srd(n): return f"s[{n}:{n+3}]"
def sr(n): return f"s{n}"
def vr(n): return f"v{n}"

class Step:
    def __init__(self, kind, h=0, t=0):
        self.kind = kind; self.h = h; self.t = t; self.bufs = []
        self.nm = 12 if kind in ("Qp", "QK", "PV", "Op") else 0
    def __repr__(self): return f"{self.kind}{self.h}.{self.t}"
class Buf:
    def __init__(self, name, units, need, kind=None, h=0, t=0):
        self.name = name; self.units = units; self.need = need; self.kind = kind; self.h = h; self.t = t
        self.issue = None; self.addr = None; self.tok = {}; self.mode = None

DEF = dict(k0="K0 W0 K1 W1 K2 W2 K3 W3 K4 W4 K5 K6 W5 K7",
           v0="V0 W6 V1 W7 V2 W8 V3 W9 V4 V5 V6 V7",
           k1="K0 K1 K2 W0 K3 W1 K4 W2 K5 W3 K6 K7 W4",
           v1="V0 W5 V1 W6 V2 W7 V3 W8 V4 W9 V5 V6 V7",
           PF=5, rot=True, nt=True, cpf=True, wpf=False, maxlead=8, maxunits=24,
           early={"k0.0": "first", "k0.1": 3}, nfirst=2, ahead_min=2)

def build_sequence(opt):
    seq = []
    def add(k, h=0, t=0): seq.append(Step(k, h, t))
    for t in range(10): add("Qp", 0, t)
    add("X1")
    def phase(txt, kh, wk, wh):
        for x in txt.split():
            if x[0] == "K": add("QK", kh, int(x[1:]))
            elif x[0] == "V": add("PV", kh, int(x[1:]))
            else: add(wk, wh, int(x[1:]))
    phase(opt["k0"], 0, "Qp", 1)
    add("M1", 0); add("M2", 0)
    phase(opt["v0"], 0, "Qp", 1)
    phase(opt["k1"], 1, "Op", 0)
    add("M2", 1)
    phase(opt["v1"], 1, "Op", 0)
    add("X3"); add("X4")
    for t in range(10): add("Op", 1, t)
    return seq

def plan(opt, verbose=False):
    seq = build_sequence(opt); NS = len(seq)
    idx = {repr(s): i for i, s in enumerate(seq)}
    occ = [[False] * NUNIT for _ in range(NS + 2)]
    def find(units, s0, s1, top=False):
        NP = NUNIT if units == 1 else NUNIT - 2
        rng = range(NP - units, -1, -1) if (top or units == 1) else range(0, NP - units + 1)
        for base in rng:
            if all(not occ[s + 1][base + u] for s in range(s0, s1 + 1) for u in range(units)): return base
        return None
    def reserve(buf, s0, s1, top=False):
        base = find(buf.units, s0, s1, top)
        if base is None: return False
        for s in range(s0, s1 + 1):
            for u in range(buf.units): occ[s + 1][base + u] = True
        buf.addr = base * UNIT; buf.issue = s0
        return True
    X = {}
    def xbuf(name, units, s0, s1):
        b = Buf(name, units, s1); assert reserve(b, s0, s1), name; X[name] = b
    tiles = []
    for i, st in enumerate(seq):
        if st.kind == "Qp":
            b1 = Buf(f"wq{st.h}.{st.t}", 12, i, "wq", st.h, st.t); st.bufs = [b1]; tiles.append(b1)
            if st.h == 0:
                b2 = Buf(f"x.{st.t}", 4, i, "x", 0, st.t); st.bufs.append(b2); tiles.append(b2)
        elif st.kind == "QK": b = Buf(f"k{st.h}.{st.t}", 12, i, "k", st.h, st.t); st.bufs = [b]; tiles.append(b)
        elif st.kind == "PV": b = Buf(f"v{st.h}.{st.t}", 12, i, "v", st.h, st.t); st.bufs = [b]; tiles.append(b)
        elif st.kind == "Op": b = Buf(f"wo{st.h}.{st.t}", 12, i, "wo", st.h, st.t); st.bufs = [b]; tiles.append(b)
    def compute_before(i, n):
        s = i
        while n > 0 and s >= 0:
            s -= 1
            if s >= 0 and seq[s].nm > 0: n -= 1
        return s
    i = idx["X10.0"]; xbuf("xQ0", 12, i, i)
    i = idx["Qp1.9"]; xbuf("xQ1", 12, i + 1, i + 2)
    i = idx["M10.0"]; xbuf("m0", 1, i, i + 1)
    i = idx["PV0.6"]; xbuf("l0", 1, i, idx["QK1.1"])
    i = idx["QK1.0"]; xbuf("xO0a", 24, i, i + 1); xbuf("xO0b", 12, i + 1, i + 2)
    i = idx["QK1.7"]; xbuf("m1", 1, i + 1, idx["M21.0"])
    i = idx["PV1.6"]; xbuf("l1", 1, i, idx["X40.0"])
    i = idx["X30.0"]; xbuf("xO1a", 24, i, i + 1); xbuf("xO1b", 12, i + 1, i + 2)
    byname = {b.name: b for b in tiles}
    early = opt["early"]
    for b in tiles: b.mode = "a"
    for n, when in early.items():
        b = byname[n]; s0 = -1 if when == "first" else when
        assert reserve(b, s0, b.need, top=True), n
    last = -1; per_step = {}
    nfirst = opt["nfirst"]
    for b in tiles:
        if b.name in early: continue
        s = max(last, b.need - opt["maxlead"], -1)
        if b.kind in ("wq", "x") and b.h == 0 and b.t < nfirst: s = -1
        else: s = max(s, 0)
        while s < b.need:
            ok = (s < 0 or seq[s].nm > 0)
            if ok and s >= 0 and per_step.get(s, 0) + b.units > opt["maxunits"]: ok = False
            if ok and reserve(b, s, b.need): break
            s += 1
        assert b.addr is not None, b.name
        per_step[b.issue] = per_step.get(b.issue, 0) + b.units
        last = b.issue
    issue_at = {}
    order = [byname[n] for n, w in early.items() if w == "first"] + [b for b in tiles if b.name not in early or early[b.name] != "first"]
    for b in order: issue_at.setdefault(b.issue, []).append(b)
    for s_, lst in issue_at.items():
        lst.sort(key=lambda b: (b.name in early and early[b.name] != "first"))
    if verbose:
        for i, st in enumerate(seq):
            print(i, st, [(b.name, b.issue, b.addr // UNIT) for b in st.bufs], "issues:", [b.name for b in issue_at.get(i, [])], "occ", sum(occ[i + 1]))
        print("prologue:", [b.name for b in issue_at.get(-1, [])])
    return seq, idx, X, issue_at

def gen(name, stamps=False, opt=None, verbose=False):
    o = dict(DEF); o.update(opt or {}); opt = o
    seq, idx, X, issue_at = plan(opt, verbose)
    NS = len(seq); PF = opt["PF"]
    ntf = "nt" if opt["nt"] else ""
    T0, T1, T2, T3 = sr(S_T0), sr(S_T1), sr(S_T2), sr(S_T3)
    a = Asm()
    stamp_n = [0]; stamp_names = []
    def stamp(nm="-", record=True):
        if not stamps: return
        k = stamp_n[0]; stamp_n[0] += 1
        if record: stamp_names.append(nm)
        a.raw(f"s_memtime s[{S_ST}:{S_ST+1}]", "smem")
        a.wait_lds_all()
        a.s("s_sub_u32", sr(S_ST), sr(S_ST), sr(S_TM))
        a.add(I(f"v_writelane_b32 v{V_ST + k // 64}, s{S_ST}, {k % 64}", "valu", [("s", S_ST)], [("v", V_ST + k // 64)]))

    a.s("s_cmp_ge_u32", "s2", 256)
    a.raw("s_cbranch_scc1 L_end", "branch")
    a.raw("s_load_dwordx16 s[4:19], s[0:1], 0", "smem")
    if stamps: a.raw(f"s_memtime s[{S_TM}:{S_TM+1}]", "smem")
    a.s("s_lshr_b32", sr(S_B), "s2", 4)
    a.s("s_and_b32", T0, "s2", 7); a.s("s_lshl_b32", T0, T0, 1); a.s("s_bfe_u32", T1, "s2", "0x10003"); a.s("s_or_b32", sr(S_J), T0, T1)
    tv = [f"v{V_S+i}" for i in range(20)]
    vl, vw, vi32, vhf, vg1, vrr, vcc_, vf, vlp, vqh, vrh, t0, t1, t2, t3, t4 = tv[:16]
    a.v("v_and_b32", vl, 63, "v0"); a.v("v_lshrrev_b32", vw, 6, "v0")
    a.v("v_readfirstlane_b32", sr(S_W), vw)
    a.v("v_lshlrev_b32", vr(V_L16), 4, vl)
    def f16_of(dst, r, tmp):
        a.v("v_and_b32", dst, 2, r); a.v("v_lshlrev_b32", dst, 5, dst)
        a.v("v_and_b32", tmp, 4, r); a.v("v_lshlrev_b32", tmp, 3, tmp); a.v("v_or_b32", dst, dst, tmp)
        a.v("v_and_b32", tmp, 8, r); a.v("v_lshlrev_b32", tmp, 1, tmp); a.v("v_or_b32", dst, dst, tmp)
    for n in range(6):
        a.v("v_add_u32", t0, n * 64, vl)
        a.v("v_mul_u32_u24", t1, 2731, t0); a.v("v_lshrrev_b32", t1, 16, t1)
        f16_of(vf, t1, t2)
        a.v("v_lshlrev_b32", t0, 4, t0); a.v("v_xor_b32", t0, t0, vf)
        a.v("v_subrev_u32", vr(V_KV + n), (n & 3) * 1024, t0)
        a.v("v_mul_u32_u24", t2, 12288 - 384, t1); a.v("v_add_u32", t2, t2, t0)
        a.v("v_subrev_u32", vr(V_WQ + n), (n & 3) * 1024, t2)
    for od, reg in ((0, V_E), (1, V_O)):
        a.v("v_lshrrev_b32", t1, 3, vl)
        if od: a.v("v_add_u32", t1, 8, t1)
        f16_of(vf, t1, t2)
        a.v("v_and_b32", t0, 7, vl); a.v("v_lshlrev_b32", t0, 4, t0); a.v("v_xor_b32", t0, t0, vf)
        a.v("v_mul_u32_u24", t1, 1280, t1); a.v("v_add_u32", vr(reg), t0, t1)
        if od: a.v("v_subrev_u32", vr(reg), 1024, vr(reg))
    a.s("s_and_b32", T0, sr(S_W), 1)
    a.s("s_mul_i32", sr(S_LR), T0, 12288); a.s("s_mul_i32", sr(S_LA), sr(S_W), 6144)
    a.s("s_mul_i32", sr(S_QR), T0, 32 * 12288); a.s("s_mul_i32", sr(S_QA), sr(S_W), 16 * 12288)
    a.s("s_mul_i32", sr(S_OR), T0, 96 * 1280); a.s("s_mul_i32", sr(S_OA), sr(S_W), 48 * 1280)
    a.s("s_lshl_b32", sr(S_XL), T0, 12); a.s("s_mul_i32", sr(S_XG), T0, 32 * 1280)
    a.s("s_lshr_b32", T0, sr(S_W), 1)
    a.s("s_lshl_b32", sr(S_RH128), T0, 7)
    a.s("s_lshl_b32", T1, T0, 8); a.s("s_sub_u32", sr(S_PVB), 128, T1)
    a.s("s_mul_i32", T1, T0, 384); a.s("s_sub_u32", sr(S_PVC), 256, T1)
    a.s("s_cmp_ge_u32", sr(S_B), 10); a.s("s_cselect_b32", T0, 10, 0); a.s("s_sub_u32", sr(S_ROT), sr(S_B), T0)
    if not opt["rot"]: a.s("s_mov_b32", sr(S_ROT), 0)
    a.raw("s_waitcnt lgkmcnt(0)", "wait")
    stamp("kernarg")
    def mk_srd(dst, ptr, off_lo=None, off_hi=None, size=0):
        if off_lo is None:
            a.s("s_mov_b32", sr(dst), sr(ptr)); a.s("s_and_b32", sr(dst + 1), sr(ptr + 1), "0xffff")
        else:
            a.s("s_add_u32", sr(dst), sr(ptr), off_lo)
            a.s("s_addc_u32", sr(dst + 1), sr(ptr + 1), off_hi if off_hi is not None else 0)
            a.s("s_and_b32", sr(dst + 1), sr(dst + 1), "0xffff")
        a.s("s_mov_b32", sr(dst + 2), size); a.s("s_mov_b32", sr(dst + 3), "0x20000")
    a.s("s_lshl_b32", T2, sr(S_B), 4); a.s("s_add_u32", T2, T2, sr(S_J))
    a.s("s_mul_i32", T0, T2, 393216); a.s("s_mul_hi_u32", T1, T2, 393216)
    mk_srd(S_K, 6, T0, T1, 393216); mk_srd(S_V, 8, T0, T1, 393216)
    a.s("s_mul_i32", T0, sr(S_J), 768); mk_srd(S_WQ, 10, T0, None, 0); a.s("s_sub_u32", sr(S_WQ + 2), 7864320, T0)
    a.s("s_mul_i32", T0, sr(S_B), 81920); mk_srd(S_X, 4, T0, None, 81920)

    def late_setup():
        a.v("v_and_b32", vi32, 31, vl); a.v("v_lshrrev_b32", vhf, 5, vl)
        a.v("v_bfe_u32", vg1, vl, 4, 1); a.v("v_bfe_u32", vrr, vl, 2, 2); a.v("v_and_b32", vcc_, 3, vl)
        a.v("v_and_b32", vqh, 1, vw); a.v("v_lshrrev_b32", vrh, 1, vw)
        a.v("v_lshlrev_b32", vlp, 5, vg1); a.v("v_lshlrev_b32", t0, 3, vcc_); a.v("v_add_u32", vlp, vlp, t0)
        f16_of(vf, vi32, t2)
        a.v("v_lshlrev_b32", t0, 4, vhf); a.v("v_xor_b32", t0, t0, vf)
        a.v("v_lshlrev_b32", t1, 5, vrh); a.v("v_add_u32", t1, t1, vi32); a.v("v_mul_u32_u24", t1, 384, t1); a.v("v_add_u32", vr(V_BK), t0, t1)
        a.v("v_lshlrev_b32", t1, 5, vqh); a.v("v_add_u32", t1, t1, vi32); a.v("v_lshlrev_b32", t1, 7, t1); a.v("v_add_u32", vr(V_BX), t0, t1)
        a.v("v_and_b32", vf, 2, vrr); a.v("v_lshlrev_b32", vf, 5, vf); a.v("v_lshlrev_b32", t2, 5, vhf); a.v("v_or_b32", vf, vf, t2)
        a.v("v_lshlrev_b32", t0, 6, vrh); a.v("v_add_u32", t0, t0, vlp); a.v("v_xor_b32", t0, t0, vf)
        a.v("v_lshlrev_b32", t1, 2, vhf); a.v("v_add_u32", t1, t1, vrr)
        a.v("v_lshlrev_b32", t2, 7, t1); a.v("v_add_u32", vr(V_BO), t0, t2)
        a.v("v_lshlrev_b32", t2, 5, vrh); a.v("v_add_u32", t1, t1, t2); a.v("v_mul_u32_u24", t1, 384, t1)
        a.v("v_add_u32", t1, t1, t0); a.v("v_lshlrev_b32", t2, 7, vrh); a.v("v_add_u32", vr(V_BV), t1, t2)
        a.v("v_and_b32", vf, 2, vrr); a.v("v_lshlrev_b32", vf, 5, vf); a.v("v_lshlrev_b32", t2, 4, vhf); a.v("v_or_b32", vf, vf, t2)
        a.v("v_lshlrev_b32", t0, 6, vrh); a.v("v_add_u32", t0, t0, vlp); a.v("v_xor_b32", t0, t0, vf)
        a.v("v_lshlrev_b32", t1, 3, vhf); a.v("v_add_u32", t1, t1, vrr); a.v("v_mul_u32_u24", t1, 384, t1)
        a.v("v_add_u32", t1, t1, t0); a.v("v_lshlrev_b32", t2, 7, vrh); a.v("v_add_u32", vr(V_BQ), t1, t2)
        a.v("v_mul_u32_u24", t0, 12288, vqh); a.v("v_add_u32", vr(V_XA + 1), t0, vr(V_L16))
        a.v("v_mul_u32_u24", t1, 6144, vrh); a.v("v_add_u32", vr(V_XA), vr(V_XA + 1), t1)
        a.v("v_mul_u32_u24", t0, 12288, vw); a.v("v_add_u32", vr(V_XA + 2), t0, vr(V_L16))
        a.v("v_xor_b32", t0, 2, vw); a.v("v_mul_u32_u24", t0, 12288, t0); a.v("v_add_u32", vr(V_XP), t0, vr(V_L16))
        a.s("s_mul_i32", T0, sr(S_J), 491520); mk_srd(S_WO, 12, T0, None, 491520)
        a.s("s_mul_i32", T0, sr(S_B), 81920); mk_srd(S_OUT, 14, T0, None, 81920)
        a.s("s_mul_i32", T0, sr(S_B), 16 * 81920); mk_srd(S_P, 18, T0, None, 16 * 81920)
        a.s("s_lshl_b32", T0, sr(S_B), 8); a.s("s_add_u32", T0, T0, 0x2000000); mk_srd(S_F, 18, T0, None, 256)
        mk_srd(S_DBG, 16, None, None, 256)
        a.s("s_mov_b32", sr(S_C), hex(f32bits(math.log2(math.e) / math.sqrt(192.0))))
        a.s("s_mul_i32", sr(S_PB), sr(S_J), 81920); a.s("s_lshl_b32", T0, sr(S_W), 11); a.s("s_add_u32", sr(S_PB), sr(S_PB), T0)
    if stamps:
        a.v("v_mov_b32", vr(V_ST + 1), 0)

    def rot_tile(t, dst):
        a.s("s_add_u32", dst, sr(S_ROT), t); a.s("s_cmp_ge_u32", dst, 10); a.s("s_cselect_b32", T3, 10, 0); a.s("s_sub_u32", dst, dst, T3)

    base_stamp = stamp_n[0]
    def program(role):
        a.vm_issued = 0; a.vm_done = 0; a.lds_issued = 0; a.lds_done = 0
        stamp_n[0] = base_stamp
        rec = (role == 0)
        def st_(nm): stamp(nm, rec)
        toks = {}
        def mine(b): return b.mode == role or b.mode == "a"
        def dma_items(b):
            if not mine(b): return []
            items = []; base = b.addr; allm = (b.mode == "a")
            np_ = 6 if allm else 12
            if b.kind in ("k", "v", "wq"):
                srdn = {"k": S_K, "v": S_V, "wq": S_WQ}[b.kind]; vo = V_WQ if b.kind == "wq" else V_KV
                fl = ntf if b.kind != "wq" else opt.get("wfl", "")
                gstride = 16 * 12288 if b.kind == "wq" else 6144
                lds0 = S_LA if allm else S_LR
                def mk(m):
                    g, mm = divmod(m, 6)
                    def f():
                        if m == 0:
                            if b.kind == "wq":
                                rot_tile(b.t, sr(S_SOFF)); a.s("s_mul_i32", sr(S_SOFF), sr(S_SOFF), 64 * 12288)
                                a.s("s_add_u32", sr(S_SOFF), sr(S_SOFF), sr(S_QA if allm else S_QR))
                                if b.h: a.s("s_add_u32", sr(S_SOFF), sr(S_SOFF), 384)
                            else: a.s("s_add_u32", sr(S_SOFF), sr(lds0), b.h * 196608 + b.t * 24576)
                        if m == 6: a.s("s_add_u32", sr(S_SOFF), sr(S_SOFF), gstride)
                        if mm in (0, 4): a.s("s_add_u32", "m0", sr(lds0), base + g * 6144 + (4096 if mm == 4 else 0))
                        a.dma(vr(vo + mm), srd(srdn), sr(S_SOFF), (mm & 3) * 1024, fl)
                        if m == np_ - 1: toks[b.name] = a.vm_issued
                    return f
                for m in range(np_): items.append(mk(m))
            elif b.kind == "wo":
                def mk(m):
                    def f():
                        if m == 0:
                            rot_tile(b.t, sr(S_SOFF)); a.s("s_lshl_b32", sr(S_SOFF), sr(S_SOFF), 7)
                            a.s("s_add_u32", sr(S_SOFF), sr(S_SOFF), sr(S_OA if allm else S_OR))
                            if b.h: a.s("s_add_u32", sr(S_SOFF), sr(S_SOFF), 245760)
                        if m % 4 == 0: a.s("s_add_u32", "m0", sr(S_LA if allm else S_LR), base + m * 1024)
                        d = (m >> 1) * 20480 - (m & 3) * 1024 + (1024 if m & 1 else 0)
                        if d: a.s("s_add_u32", T2, sr(S_SOFF), d); so = T2
                        else: so = sr(S_SOFF)
                        a.dma(vr(V_O if m & 1 else V_E), srd(S_WO), so, (m & 3) * 1024, opt.get("wfl", ""))
                        if m == np_ - 1: toks[b.name] = a.vm_issued
                    return f
                for m in range(np_): items.append(mk(m))
            elif b.kind == "x":
                def mk(m):
                    def f():
                        if m == 0:
                            rot_tile(b.t, sr(S_R8)); a.s("s_lshl_b32", sr(S_R8), sr(S_R8), 7); a.s("s_add_u32", sr(S_R8), sr(S_R8), sr(S_XG))
                            a.s("s_add_u32", "m0", sr(S_XL), base)
                        d = (m >> 1) * 20480 - (m & 3) * 1024 + (1024 if m & 1 else 0)
                        if d: a.s("s_add_u32", T2, sr(S_R8), d); so = T2
                        else: so = sr(S_R8)
                        a.dma(vr(V_O if m & 1 else V_E), srd(S_X), so, m * 1024, opt.get("xfl", ""))
                        if m == 3: toks[b.name] = a.vm_issued
                    return f
                for m in range(4): items.append(mk(m))
            return items

        for b in issue_at.get(-1, []):
            for f in dma_items(b): f()
        st_("dma_issued")
        late_setup()
        if opt["cpf"]:
            a.s("s_cmp_lg_u32", sr(S_W), 3); a.raw("s_cbranch_scc1 L_nocpf", "branch")
            a.raw(f"s_getpc_b64 s[{S_CP}:{S_CP+1}]", "salu")
            a.label("L_pc")
            a.raw(f"s_sub_u32 s{S_CP}, s{S_CP}, L_pc-{KN}", "salu"); a.raw(f"s_subb_u32 s{S_CP+1}, s{S_CP+1}, 0", "salu")
            a.raw(f"s_and_b32 s{S_CP+1}, s{S_CP+1}, 0xffff", "salu"); a.raw(f"s_mov_b32 s{S_CP+2}, L_codeend-{KN}", "salu")
            a.raw(f"s_mov_b32 s{S_CP+3}, 0x20000", "salu"); a.raw("s_bfe_u32 s80, s2, 0x50003", "salu")
            a.raw("s_mul_i32 s80, s80, CPF_LINES*128", "salu")
            a.v("v_lshlrev_b32", vr(V_T), 3, vr(V_L16))
            a.nop(2)
            a.raw(f"buffer_load_dword v{V_DUM}, v{V_T}, s[{S_CP}:{S_CP+3}], s80 offen", "vmem_load")
            a.label("L_nocpf")
        if role == opt.get("wpf_role", 0) and opt["wpf"]:
            p0, p1, p2 = vr(V_T), vr(V_T + 1), vr(V_T + 2)
            for rnd in range(2):
                a.v("v_and_b32", p0, 127, "v0"); a.v("v_min_u32", p0, 119, p0); a.v("v_add_u32", p0, rnd * 120, p0)
                a.v("v_mul_u32_u24", p1, 10923, p0); a.v("v_lshrrev_b32", p1, 16, p1)
                a.v("v_mul_u32_u24", p2, 6, p1); a.v("v_sub_u32", p2, p0, p2); a.v("v_lshlrev_b32", p2, 7, p2)
                a.v("v_mul_u32_u24", p1, 12288, p1); a.v("v_add_u32", p1, p1, p2)
                a.s("s_mul_i32", T2, sr(S_B), 40 * 12288)
                a.bload("buffer_load_dword", vr(V_DUM), p1, srd(S_WQ), T2, 0, "")
                a.v("v_lshlrev_b32", p2, 7, p0)
                a.s("s_mul_i32", T3, sr(S_B), 30720)
                a.bload("buffer_load_dword", vr(V_DUM), p2, srd(S_WO), T3, 0, "")
        if role == 0:
            a.s("s_or_b32", T0, "s2", sr(S_W)); a.s("s_cmp_lg_u32", T0, 0)
            a.raw("s_cbranch_scc1 L_nononce", "branch")
            a.raw(f"s_memrealtime s[{S_NONCE}:{S_NONCE+1}]", "smem"); a.raw("s_waitcnt lgkmcnt(0)", "wait")
            a.s("s_or_b32", sr(S_NONCE), sr(S_NONCE), 1)
            a.v("v_mov_b32", vr(V_T + 2), sr(S_NONCE)); a.v("v_mov_b32", vr(V_T + 3), sr(S_NONCE + 1)); a.v("v_mov_b32", vr(V_T + 4), 0)
            a.raw(f"buffer_store_dwordx2 v[{V_T+2}:{V_T+3}], v{V_T+4}, {srd(S_DBG)}, 0 offen sc1", "vmem_store")
            a.label("L_nononce")

        def addr_items(i):
            st = seq[i]; W = V_W; its = []; sb = st.bufs[0].addr
            if st.kind == "QK":
                its.append(lambda: a.v("v_add_u32", vr(W), sb, vr(V_BK)))
                for k in (1, 2, 3): its.append(lambda k=k: a.v("v_xor_b32", vr(W + k), 32 * k, vr(W)))
            elif st.kind == "PV":
                its.append(lambda: a.v("v_add_u32", vr(W), sb, vr(V_BV)))
                its.append(lambda: a.v("v_xad_u32", vr(W + 1), vr(W), 64, sr(S_RH128)))
                its.append(lambda: a.v("v_xad_u32", vr(W + 2), vr(W), 64, sr(S_PVB)))
                its.append(lambda: a.v("v_add_u32", vr(W + 3), sr(S_PVC), vr(W)))
                for k in range(4): its.append(lambda k=k: a.v("v_xor_b32", vr(W + 4 + k), 16, vr(W + k)))
            elif st.kind == "Qp":
                its.append(lambda: a.v("v_add_u32", vr(W), sb, vr(V_BQ)))
                its.append(lambda: a.v("v_xad_u32", vr(W + 1), vr(W), 64, sr(S_RH128)))
                for k in range(2): its.append(lambda k=k: a.v("v_xor_b32", vr(W + 2 + k), 32, vr(W + k)))
                if st.h == 0:
                    sx = st.bufs[1].addr
                    its.append(lambda: a.v("v_add_u32", vr(W + 4), sx, vr(V_BX)))
                    for k in (1, 2, 3): its.append(lambda k=k: a.v("v_xor_b32", vr(W + 4 + k), 32 * k, vr(W + 4)))
            elif st.kind == "Op":
                its.append(lambda: a.v("v_add_u32", vr(W), sb, vr(V_BO)))
                its.append(lambda: a.v("v_xor_b32", vr(W + 1), 16, vr(W)))
            return its
        def frag_spec(i, n):
            st = seq[i]; W = V_W; xb = []
            if st.kind == "QK":
                reads = [("ds_read_b128", 0, 4, vr(W + (n & 3)), 128 * (n >> 2))]
                D = rs("v", V_S + 16 * st.t, 16); B = rs("v", V_Q + 4 * n, 4); C = "0" if n == 0 else D
            elif st.kind == "PV":
                u, tau = n // 6, n % 6
                reg, add = {0: (0, 0), 1: (1, 0), 2: (0, 128), 3: (2, 0), 4: (3, 0), 5: (2, 128)}[tau]
                reads = [("ds_read_b64_tr_b16", 2 * hf, 2, vr(W + reg + 4 * hf), (16 * u + 8 * hf) * 384 + add) for hf in (0, 1)]
                D = rs("a", A_O(st.h) + 16 * tau, 16); B = rs("v", V_S + 16 * st.t + 4 * u, 4)
                C = "0" if (st.t == 0 and u == 0) else D
            elif st.kind == "Qp":
                ks, T = n // 3, n % 3
                reg, add = {0: (0, 0), 1: (1, 0), 2: (0, 128)}[T]
                reads = [("ds_read_b64_tr_b16", 2 * hf, 2, vr(W + reg + 2 * hf), (16 * ks + 4 * hf) * 384 + add) for hf in (0, 1)]
                D = rs("a", A_QACC + 16 * T, 16)
                xr = A_X + 4 * (st.t * 4 + ks); B = rs("a", xr, 4)
                if T == 0 and st.h == 0: xb = [("ds_read_b128", rs("a", xr, 4), vr(W + 4 + ks), 0)]
                C = "0" if (st.t == 0 and ks == 0) else D
            else:
                reads = [("ds_read_b64_tr_b16", 2 * hf, 2, vr(W + hf), (16 * n + 8 * hf) * 128) for hf in (0, 1)]
                D = rs("a", A_OUT + 16 * st.t, 16)
                B = rs("a", A_OF + 4 * n, 4) if (st.h == 0 and i < idx["M21.0"]) else rs("v", V_Q + 4 * n, 4)
                C = "0" if (st.h == 0 and n == 0) else D
            return reads, xb, D, B, C
        gstart = {}; g = 0
        for i, st in enumerate(seq): gstart[i] = g; g += st.nm
        frag_tok = {}
        def issue_frag(i, n):
            reads, xb, D, B, C = frag_spec(i, n)
            gi = gstart[i] + n; rb = V_A + 4 * (gi % NRING); tok = None
            for (op, dst, addr, off) in xb: a.ds_read(op, dst, addr, off)
            for (op, ro, cnt, addr, off) in reads: tok = a.ds_read(op, rs("v", rb + ro, cnt), addr, off)
            frag_tok[gi] = tok

        def max_items(t, first):
            regs = [V_S + 16 * t + k for k in range(16)]; its = []
            if first:
                its.append(lambda: a.v("v_max3_f32", vr(V_M), vr(regs[0]), vr(regs[1]), vr(regs[2])))
                rest = regs[3:]
                for k in range(0, 12, 2): its.append(lambda k=k: a.v("v_max3_f32", vr(V_M), vr(V_M), vr(rest[k]), vr(rest[k + 1])))
                its.append(lambda: a.v("v_max_f32", vr(V_M), vr(V_M), vr(rest[12])))
            else:
                for k in range(0, 16, 2): its.append(lambda k=k: a.v("v_max3_f32", vr(V_M), vr(V_M), vr(regs[k]), vr(regs[k + 1])))
            return its
        def xhalf(reg, op):
            x0, x1 = vr(V_T), vr(V_T + 1)
            a.v("v_mov_b32", x0, vr(reg)); a.v("v_mov_b32", x1, vr(reg))
            a.v("v_permlane32_swap_b32", x0, x1); a.v(op, vr(reg), x0, x1)
        def scr_addr(dst, partner, buf):
            a.v("v_lshrrev_b32", dst, 2, vr(V_L16))
            a.s("s_lshl_b32", T2, sr(S_W), 8)
            if partner: a.s("s_xor_b32", T2, T2, 512)
            a.s("s_add_u32", T2, T2, buf.addr)
            a.v("v_add_u32", dst, T2, dst)
        def m_send(h):
            def f():
                xhalf(V_M, "v_max_f32"); scr_addr(vr(V_T + 2), False, X[f"m{h}"])
                a.ds_write("ds_write_b32", vr(V_T + 2), vr(V_M)); a.wait_lds_all()
            return f
        def m_recv(h):
            def f():
                scr_addr(vr(V_T + 2), True, X[f"m{h}"])
                tok = a.ds_read("ds_read_b32", vr(V_T + 3), vr(V_T + 2)); a.wait_lds(tok)
                a.v("v_max_f32", vr(V_M), vr(V_M), vr(V_T + 3)); a.v("v_mul_f32", vr(V_MC), sr(S_C), vr(V_M)); a.v("v_mov_b32", vr(V_L), 0)
            return f
        def p_items(t):
            base = V_S + 16 * t; fs = []; gs = []
            for k in range(0, 16, 2):
                r0 = base + k
                def f(r0=r0):
                    a.v("v_fma_f32", vr(r0), vr(r0), sr(S_C), f"-v{V_MC}"); a.v("v_fma_f32", vr(r0 + 1), vr(r0 + 1), sr(S_C), f"-v{V_MC}")
                    a.v("v_exp_f32", vr(r0), vr(r0)); a.v("v_exp_f32", vr(r0 + 1), vr(r0 + 1))
                def g_(r0=r0, k=k):
                    a.v("v_add_f32", vr(V_L), vr(V_L), vr(r0)); a.v("v_add_f32", vr(V_L), vr(V_L), vr(r0 + 1))
                    a.v("v_cvt_pk_bf16_f32", vr(base + k // 2), vr(r0), vr(r0 + 1))
                fs.append(f); gs.append(g_)
            out = []
            for k in range(8):
                out.append(fs[k])
                if k >= 1: out.append(gs[k - 1])
            out.append(gs[7]); return out
        def l_send(h):
            def f():
                xhalf(V_L, "v_add_f32"); scr_addr(vr(V_T + 2), False, X[f"l{h}"])
                a.ds_write("ds_write_b32", vr(V_T + 2), vr(V_L)); a.wait_lds_all()
            return f
        def q_write_items(buf):
            its = []
            for T in range(3):
                for u in range(2):
                    def f(T=T, u=u):
                        t = [vr(V_T + k) for k in range(8)]; q = [vr(V_T + 8 + k) for k in range(4)]
                        for k in range(8): a.v("v_accvgpr_read_b32", t[k], f"a{A_QACC + 16*T + 8*u + k}")
                        for k in range(4): a.v("v_cvt_pk_bf16_f32", q[k], t[2 * k], t[2 * k + 1])
                        a.v("v_permlane32_swap_b32", q[0], q[2]); a.v("v_permlane32_swap_b32", q[1], q[3])
                        a.v("v_add_u32", t[0], buf.addr, vr(V_XA))
                        a.ds_write("ds_write_b128", t[0], rs("v", V_T + 8, 4), (2 * T + u) * 1024)
                    its.append(f)
            its.append(lambda: a.wait_lds_all()); return its
        def frags_read_items(buf, dkind, dbase):
            its = [lambda: a.v("v_add_u32", vr(V_T + 12), buf.addr, vr(V_XA + 1))]
            for s_ in range(12): its.append(lambda s_=s_: a.ds_read("ds_read_b128", rs(dkind, dbase + 4 * s_, 4), vr(V_T + 12), s_ * 1024))
            its.append(lambda: a.wait_lds_all()); return its
        def o_send_items(buf, h):
            its = [lambda: a.v("v_add_u32", vr(V_T + 12), buf.addr, vr(V_XA + 2))]
            for k in range(12): its.append(lambda k=k: a.ds_write("ds_write_b128", vr(V_T + 12), rs("a", A_O(h) + 48 + 4 * k, 4), k * 1024))
            its.append(lambda: a.wait_lds_all()); return its
        def o_comb_items(bufa, bufb, lbuf, RB, h):
            its = []
            def f0():
                a.v("v_add_u32", vr(V_T + 12), bufa.addr, vr(V_XP))
                scr_addr(vr(V_T + 13), True, lbuf)
                a.ds_read("ds_read_b32", vr(V_T + 14), vr(V_T + 13))
                for k in range(12): a.ds_read("ds_read_b128", rs("v", RB + 4 * k, 4), vr(V_T + 12), k * 1024)
                a.wait_lds_all()
                a.v("v_add_f32", vr(V_RINV), vr(V_L), vr(V_T + 14)); a.v("v_rcp_f32", vr(V_RINV), vr(V_RINV))
                a.v("v_add_u32", vr(V_T + 12), bufb.addr, vr(V_XA))
            its.append(f0)
            for fr in range(6):
                def f(fr=fr):
                    t = [vr(V_T + k) for k in range(8)]; q = [vr(V_T + 8 + k) for k in range(4)]
                    for k in range(8): a.v("v_accvgpr_read_b32", t[k], f"a{A_O(h) + 8*fr + k}")
                    for k in range(8): a.v("v_add_f32", t[k], t[k], vr(RB + 8 * fr + k))
                    for k in range(8): a.v("v_mul_f32", t[k], t[k], vr(V_RINV))
                    for k in range(4): a.v("v_cvt_pk_bf16_f32", q[k], t[2 * k], t[2 * k + 1])
                    a.ds_write("ds_write_b128", vr(V_T + 12), rs("v", V_T + 8, 4), fr * 1024)
                its.append(f)
            its.append(lambda: a.wait_lds_all()); return its
        def pstore_items(t):
            tb = V_S + 24 * (t & 1)
            def f1():
                for k in range(16): a.v("v_accvgpr_read_b32", vr(tb + k), f"a{A_OUT + 16*t + k}")
            def f2():
                for k in range(8): a.v("v_cvt_pk_bf16_f32", vr(tb + 16 + k), vr(tb + 2 * k), vr(tb + 2 * k + 1))
            def f3():
                rot_tile(t, T2); a.s("s_lshl_b32", T2, T2, 13); a.s("s_add_u32", T2, T2, sr(S_PB))
                a.bstore("buffer_store_dwordx4", rs("v", tb + 16, 4), vr(V_L16), srd(S_P), T2, 0, "sc1")
                a.bstore("buffer_store_dwordx4", rs("v", tb + 20, 4), vr(V_L16), srd(S_P), T2, 1024, "sc1")
            return [f1, f2, f3]
        side = {i: [] for i in range(NS + 1)}
        def ix(n): return idx[n]
        for i, st in enumerate(seq):
            if st.kind == "QK":
                if not (st.h == 0 and st.t == 7): side[i + 1] += max_items(st.t, st.t == 0)
                if st.t == 7 and st.h == 1: side[i + 1] += [m_send(1)]
            if st.kind == "PV" and st.t < 7:
                side[i] += p_items(st.t + 1)
                if st.t == 6: side[i] += [l_send(st.h)]
            if st.kind == "Op" and st.h == 1: side[i + 1] += pstore_items(st.t)
        side[ix("Qp1.9") + 1] = q_write_items(X["xQ1"]) + side[ix("Qp1.9") + 1]
        side[ix("Qp1.9") + 2] = frags_read_items(X["xQ1"], "v", V_Q) + side[ix("Qp1.9") + 2]
        side[ix("QK1.0")] = o_send_items(X["xO0a"], 0) + side[ix("QK1.0")]
        side[ix("QK1.1")] += o_comb_items(X["xO0a"], X["xO0b"], X["l0"], V_S + 64, 0)
        side[ix("QK1.2")] += frags_read_items(X["xO0b"], "a", A_OF)

        landed = set(); prefetched = {}
        def wait_tiles(i):
            tk = [toks[b.name] for b in seq[i].bufs if mine(b)]
            if tk: a.wait_vm(max(tk))
        def can_ahead(i, j): return all(b.issue <= i - opt.get("ahead_min", 2) for b in seq[j].bufs)
        for i, st in enumerate(seq):
            a.comment(f"---- step {i}: {st}")
            st_(repr(st))
            if st.nm == 0:
                if st.kind == "X1":
                    a.barrier()
                    for f in q_write_items(X["xQ0"]): f()
                    a.barrier()
                    for f in frags_read_items(X["xQ0"], "v", V_Q): f()
                elif st.kind == "M1":
                    a.barrier()
                    for f in max_items(7, False): f()
                    m_send(0)()
                elif st.kind == "M2":
                    a.barrier(); m_recv(st.h)()
                    if st.h == 1:
                        for k in range(48): a.v("v_accvgpr_read_b32", vr(V_Q + k), f"a{A_OF + k}")
                    for f in p_items(0): f()
                elif st.kind == "X3":
                    a.barrier()
                    for f in o_send_items(X["xO1a"], 1): f()
                elif st.kind == "X4":
                    a.barrier()
                    for f in o_comb_items(X["xO1a"], X["xO1b"], X["l1"], V_S + 64, 1): f()
                continue
            if i not in landed: wait_tiles(i); landed.add(i)
            j = i + 1 if (i + 1 < NS and seq[i + 1].nm > 0) else None
            ahead = j is not None and can_ahead(i, j)
            if ahead: wait_tiles(j)
            a.barrier()
            if ahead: landed.add(j)
            if repr(st) == "Op1.0":
                for f in frags_read_items(X["xO1b"], "v", V_Q): f()
            n0 = prefetched.get(i, 0)
            if n0 == 0:
                for f in addr_items(i): f()
                for n in range(min(PF, st.nm)): issue_frag(i, n)
                n0 = min(PF, st.nm)
            dm = []
            for b in issue_at.get(i, []): dm += dma_items(b)
            sd = list(side[i]); queue = []
            ratio = max(1, round(len(sd) / max(1, len(dm)))) if dm else 1
            while dm or sd:
                if dm: queue.append(dm.pop(0))
                for _ in range(ratio):
                    if sd: queue.append(sd.pop(0))
            nq = len(queue); done = 0; issued = n0
            for n in range(st.nm):
                if issued < st.nm: issue_frag(i, issued); issued += 1
                elif ahead:
                    k = issued - st.nm
                    if k == 0 and prefetched.get(j, 0) == 0:
                        for f in addr_items(j): f()
                    if k < min(PF, seq[j].nm): issue_frag(j, k); prefetched[j] = k + 1; issued += 1
                gi = gstart[i] + n
                a.wait_lds(frag_tok[gi])
                reads, xb, D, B, C = frag_spec(i, n)
                a.mfma(D, rs("v", V_A + 4 * (gi % NRING), 4), B, C, shape="32x32x16")
                target = math.ceil(nq * (n + 1) / st.nm)
                while done < min(target, nq): queue[done](); done += 1
            assert done == nq
        for f in side[NS]: f()
        st_("endop")
        a.wait_vm_all()
    program(0)
    a.barrier(); stamp("stored")
    vt = [vr(V_T + k) for k in range(8)]
    a.s("s_cmp_lg_u32", sr(S_W), 0)
    a.raw("s_cbranch_scc1 L_sync_done", "branch")
    a.v("v_mov_b32", vt[0], 0); a.s("s_mov_b32", T1, 0)
    a.label("L_nonce")
    a.s("s_add_u32", T1, T1, 1); a.s("s_cmp_gt_u32", T1, 100000); a.raw("s_cbranch_scc1 L_sync_done", "branch")
    a.raw(f"buffer_load_dwordx2 v[{V_T+2}:{V_T+3}], {vt[0]}, {srd(S_DBG)}, 0 offen sc1", "vmem_load")
    a.raw("s_waitcnt vmcnt(0)", "wait")
    a.v("v_readfirstlane_b32", sr(S_NONCE), vt[2]); a.nop(2)
    a.s("s_cmp_eq_u32", sr(S_NONCE), 0); a.raw("s_cbranch_scc1 L_nonce", "branch")
    a.s("s_lshl_b32", T0, sr(S_J), 3); a.v("v_mov_b32", vt[0], T0)
    a.raw(f"buffer_store_dwordx2 v[{V_T+2}:{V_T+3}], {vt[0]}, {srd(S_F)}, 0 offen sc1", "vmem_store")
    a.v("v_and_b32", vt[1], 15, "v0"); a.v("v_lshlrev_b32", vt[1], 3, vt[1])
    a.label("L_poll")
    a.s("s_add_u32", T1, T1, 1); a.s("s_cmp_gt_u32", T1, 200000); a.raw("s_cbranch_scc1 L_sync_done", "branch")
    a.raw(f"buffer_load_dwordx2 v[{V_T+4}:{V_T+5}], {vt[1]}, {srd(S_F)}, 0 offen sc1", "vmem_load")
    a.raw("s_waitcnt vmcnt(0)", "wait")
    a.add(I(f"v_cmp_eq_u32 vcc, {vt[4]}, {vt[2]}", "valu", [], [("vcc", 0)]))
    a.add(I(f"v_cmp_eq_u32 s[{S_SAVE}:{S_SAVE+1}], {vt[5]}, {vt[3]}", "valu", [], [("s", S_SAVE), ("s", S_SAVE + 1)]))
    a.nop(2)
    a.s("s_and_b64", f"s[{S_SAVE}:{S_SAVE+1}]", f"s[{S_SAVE}:{S_SAVE+1}]", "vcc")
    a.raw(f"s_cmp_eq_u64 s[{S_SAVE}:{S_SAVE+1}], -1", "salu")
    a.raw("s_cbranch_scc0 L_poll", "branch")
    a.label("L_sync_done")
    a.barrier(); stamp("synced")
    a.vm_issued = 0; a.vm_done = 0
    a.s("s_mul_i32", T0, sr(S_J), 5); a.s("s_add_u32", T1, T0, sr(S_W)); a.s("s_lshl_b32", T2, T1, 10)
    LB = V_S
    for p in range(16):
        a.s("s_add_u32", T3, T2, p * 81920)
        a.bload("buffer_load_dwordx4", rs("v", LB + 4 * p, 4), vr(V_L16), srd(S_P), T3, 0, "sc1")
    tok1 = a.vm_issued
    a.s("s_add_u32", T0, T0, 4); a.s("s_lshl_b32", T3, T0, 10)
    a.s("s_mul_i32", T2, sr(S_W), 4 * 81920); a.s("s_add_u32", T3, T3, T2)
    for p in range(4):
        a.bload("buffer_load_dwordx4", rs("v", LB + 64 + 4 * p, 4), vr(V_L16), srd(S_P), T3, 0, "sc1")
        if p < 3: a.s("s_add_u32", T3, T3, 81920)
    tok2 = a.vm_issued
    ACC = 208
    a.s("s_mov_b32", sr(S_SAVE), "0x3f80"); a.s("s_mov_b32", sr(S_SAVE + 1), "0x3f800000")
    def accum(acc, r, first):
        for k in range(4):
            lo, hi = vr(acc + 2 * k), vr(acc + 2 * k + 1)
            if first:
                a.v("v_lshlrev_b32", lo, 16, vr(r + k)); a.v("v_and_b32", hi, "0xffff0000", vr(r + k))
            else:
                a.v("v_dot2c_f32_bf16", lo, sr(S_SAVE), vr(r + k)); a.v("v_dot2c_f32_bf16", hi, sr(S_SAVE + 1), vr(r + k))
    for p in range(16):
        a.wait_vm(tok1 - 15 + p); accum(ACC, LB + 4 * p, p == 0)
    for p in range(4):
        a.wait_vm(tok2 - 3 + p); accum(ACC + 8, LB + 64 + 4 * p, p == 0)
    a.v("v_lshlrev_b32", vt[2], 1, vr(V_L16))
    a.s("s_lshl_b32", T2, sr(S_W), 11); a.v("v_add_u32", vt[3], T2, vt[2])
    a.ds_write("ds_write_b128", vt[3], rs("v", ACC + 8, 4), 0); a.ds_write("ds_write_b128", vt[3], rs("v", ACC + 12, 4), 16)
    def out_store(cS, acc):
        a.s("s_lshr_b32", T2, cS, 3); a.s("s_lshl_b32", T2, T2, 7)
        a.s("s_bfe_u32", T3, cS, "0x10002"); a.s("s_lshl_b32", T3, T3, 6); a.s("s_add_u32", T2, T2, T3)
        a.s("s_and_b32", T3, cS, 1); a.s("s_lshl_b32", T3, T3, 5); a.s("s_add_u32", T2, T2, T3)
        a.s("s_bfe_u32", T3, cS, "0x10001"); a.s("s_mul_i32", T3, T3, 32 * 1280); a.s("s_add_u32", T2, T2, T3)
        for k in range(4): a.v("v_cvt_pk_bf16_f32", vr(224 + k), vr(acc + 2 * k), vr(acc + 2 * k + 1))
        a.v("v_permlane32_swap_b32", "v224", "v226"); a.v("v_permlane32_swap_b32", "v225", "v227")
        a.v("v_and_b32", vt[4], 31, "v0"); a.v("v_mul_u32_u24", vt[4], 1280, vt[4])
        a.v("v_bfe_u32", vt[5], "v0", 5, 1); a.v("v_lshlrev_b32", vt[5], 4, vt[5]); a.v("v_add_u32", vt[4], vt[4], vt[5])
        a.bstore("buffer_store_dwordx4", "v[224:227]", vt[4], srd(S_OUT), T2, 0)
    out_store(T1, ACC)
    a.wait_lds_all(); a.barrier()
    a.s("s_cmp_lg_u32", sr(S_W), 0)
    a.raw("s_cbranch_scc1 L_fin", "branch")
    for ww in range(4):
        a.ds_read("ds_read_b128", rs("v", LB + 8 * ww, 4), vt[2], ww * 2048); a.ds_read("ds_read_b128", rs("v", LB + 8 * ww + 4, 4), vt[2], ww * 2048 + 16)
    a.wait_lds_all()
    for k in range(8):
        a.v("v_add_f32", vr(LB + k), vr(LB + k), vr(LB + 8 + k)); a.v("v_add_f32", vr(LB + 16 + k), vr(LB + 16 + k), vr(LB + 24 + k))
    for k in range(8): a.v("v_add_f32", vr(LB + k), vr(LB + k), vr(LB + 16 + k))
    a.nop(2)
    out_store(T0, LB)
    a.label("L_fin")
    if stamps:
        a.raw("s_waitcnt vmcnt(0)", "wait"); stamp("end")
        a.s("s_lshl_b32", T0, "s2", 2); a.s("s_add_u32", T0, T0, sr(S_W)); a.s("s_lshl_b32", T0, T0, 9)
        a.s("s_add_u32", sr(S_F), "s18", 0x4000000); a.s("s_addc_u32", sr(S_F + 1), "s19", 0); a.s("s_and_b32", sr(S_F + 1), sr(S_F + 1), "0xffff")
        a.s("s_mov_b32", sr(S_F + 2), 1024 * 512)
        a.v("v_and_b32", vt[0], 63, "v0"); a.v("v_lshlrev_b32", vt[0], 2, vt[0]); a.nop(4)
        a.raw(f"buffer_store_dword v{V_ST}, {vt[0]}, {srd(S_F)}, {T0} offen", "vmem_store")
        a.raw(f"buffer_store_dword v{V_ST+1}, {vt[0]}, {srd(S_F)}, {T0} offen offset:256", "vmem_store")
    a.label("L_end"); a.raw("s_endpgm", "other"); a.label("L_codeend")
    a.finalize()
    hdr = [f"; @launch grid=(256,1,1) block=(256,1,1) lds=163840", '.amdgcn_target "amdgcn-amd-amdhsa--gfx950"', ".text",
           f".set CPF_LINES, ((L_codeend-{KN})/128+32)/32", f".globl {KN}", ".p2align 8", f".type {KN},@function", f"{KN}:"]
    ftr = ['.section .rodata,"a"', ".p2align 6", f".amdhsa_kernel {KN}",
           "  .amdhsa_next_free_vgpr 512", "  .amdhsa_next_free_sgpr 100", "  .amdhsa_accum_offset 256",
           "  .amdhsa_group_segment_fixed_size 0", "  .amdhsa_kernarg_size 64", "  .amdhsa_user_sgpr_count 2",
           "  .amdhsa_user_sgpr_kernarg_segment_ptr 1", "  .amdhsa_system_sgpr_workgroup_id_x 1", ".end_amdhsa_kernel"]
    txt = "\n".join(l.strip() if not l.startswith(";") else l for l in a.text().splitlines() if not l.strip().startswith("; ----")) + "\n"
    open(name, "w").write("\n".join(hdr) + "\n" + txt + "\n".join(ftr) + "\n")
    print(name, "instrs:", len(a.ins), "steps:", NS, "stamps:", stamp_n[0])
    return stamp_names

if __name__ == "__main__":
    gen("v4.s", verbose=False)
    names = gen("v4_st.s", stamps=True)
    open("v4_steps.txt", "w").write("\n".join(names))
    gen("v4x.s", opt=dict(xfl="nt"))
    gen("v4x_st.s", stamps=True, opt=dict(xfl="nt"))
    gen("v4p.s", opt=dict(nt=False))
    gen("v4c.s", opt=dict(cpf=False, xfl="nt"))
```

```python
import sys, math, struct
from asmlib import *

KN = "standalone__gqa_block_cached__near_ridge_kernel"
UNIT = 2048
NUNIT = 80
def f32bits(x): return struct.unpack("<I", struct.pack("<f", x))[0]

V_KV = 1; V_WQ = 7; V_E = 13; V_O = 14
V_BK = 15; V_BV = 16; V_BQ = 17; V_BX = 18; V_BO = 19
V_W = 20
V_M = 28; V_MC = 29; V_L = 30; V_RINV = 31
V_T = 32
V_L16 = 48
V_XA = 49
V_ST = 52
V_DUM = 54; V_XP = 55
V_A = 56; NRING = 6
V_Q = 80
V_S = 128
A_OUT = 0; A_X = 0
A_QACC = 160; A_OF = 160
def A_O(h): return 0 if h == 0 else 160

S_K = 20; S_V = 24; S_WQ = 28; S_WO = 32; S_X = 36; S_P = 40; S_F = 44; S_OUT = 48; S_DBG = 52
S_B = 56; S_J = 57; S_W = 58; S_C = 60; S_SOFF = 61; S_T0 = 62; S_T1 = 63
S_NONCE = 64; S_PB = 66; S_SAVE = 68; S_TM = 70; S_T2 = 72; S_T3 = 73
S_RH128 = 74; S_PVB = 75; S_CP = 76; S_PVC = 81
S_ROT = 84
S_LR = 82; S_LA = 83
S_QR = 85; S_QA = 86
S_OR = 87; S_OA = 88
S_XL = 89; S_XG = 90
S_R8 = 91
S_ST = 94
def srd(n): return f"s[{n}:{n+3}]"
def sr(n): return f"s{n}"
def vr(n): return f"v{n}"

class Step:
    def __init__(self, kind, h=0, t=0):
        self.kind = kind; self.h = h; self.t = t; self.bufs = []
        self.nm = 12 if kind in ("Qp", "QK", "PV", "Op") else 0
    def __repr__(self): return f"{self.kind}{self.h}.{self.t}"
class Buf:
    def __init__(self, name, units, need, kind=None, h=0, t=0):
        self.name = name; self.units = units; self.need = need; self.kind = kind; self.h = h; self.t = t
        self.issue = None; self.addr = None; self.tok = {}; self.mode = None

DEF = dict(k0="K0 W0 K1 W1 K2 W2 K3 W3 K4 W4 K5 K6 W5 K7",
           v0="V0 W6 V1 W7 V2 W8 V3 W9 V4 V5 V6 V7",
           k1="K0 K1 K2 W0 K3 W1 K4 W2 K5 W3 K6 K7 W4",
           v1="V0 W5 V1 W6 V2 W7 V3 W8 V4 W9 V5 V6 V7",
           PF=5, rot=True, nt=True, cpf=True, wpf=False, maxlead=8, maxunits=24,
           early={"k0.0": "first", "k0.1": 3}, nfirst=2, ahead_min=2,
           st_sched={"Op1.5": [0, 1], "Op1.6": [2, 3], "Op1.7": [4, 5], "Op1.8": [6, 7], "Op1.9": [8], "end": [9]}, xall=False, front=False, ninit=3, xpf=False, wq_pf=None, wo_pf=None, tail2=True)

def build_sequence(opt):
    seq = []
    def add(k, h=0, t=0): seq.append(Step(k, h, t))
    for t in range(10): add("Qp", 0, t)
    add("X1")
    def phase(txt, kh, wk, wh):
        for x in txt.split():
            if x[0] == "K": add("QK", kh, int(x[1:]))
            elif x[0] == "V": add("PV", kh, int(x[1:]))
            else: add(wk, wh, int(x[1:]))
    phase(opt["k0"], 0, "Qp", 1)
    add("M1", 0); add("M2", 0)
    phase(opt["v0"], 0, "Qp", 1)
    phase(opt["k1"], 1, "Op", 0)
    add("M2", 1)
    phase(opt["v1"], 1, "Op", 0)
    add("X3"); add("X4")
    for t in range(10): add("Op", 1, t)
    return seq

def plan(opt, verbose=False):
    seq = build_sequence(opt); NS = len(seq)
    idx = {repr(s): i for i, s in enumerate(seq)}
    occ = [[False] * NUNIT for _ in range(NS + 2)]
    def find(units, s0, s1, top=False):
        NP = NUNIT if units == 1 else NUNIT - 2
        rng = range(NP - units, -1, -1) if (top or units == 1) else range(0, NP - units + 1)
        for base in rng:
            if all(not occ[s + 1][base + u] for s in range(s0, s1 + 1) for u in range(units)): return base
        return None
    def reserve(buf, s0, s1, top=False):
        base = find(buf.units, s0, s1, top)
        if base is None: return False
        for s in range(s0, s1 + 1):
            for u in range(buf.units): occ[s + 1][base + u] = True
        buf.addr = base * UNIT; buf.issue = s0
        return True
    X = {}
    def xbuf(name, units, s0, s1):
        b = Buf(name, units, s1); assert reserve(b, s0, s1), name; X[name] = b
    tiles = []
    for i, st in enumerate(seq):
        if st.kind == "Qp":
            b1 = Buf(f"wq{st.h}.{st.t}", 12, i, "wq", st.h, st.t); st.bufs = [b1]; tiles.append(b1)
            if st.h == 0:
                b2 = Buf(f"x.{st.t}", 4, i, "x", 0, st.t); st.bufs.append(b2); tiles.append(b2)
        elif st.kind == "QK": b = Buf(f"k{st.h}.{st.t}", 12, i, "k", st.h, st.t); st.bufs = [b]; tiles.append(b)
        elif st.kind == "PV": b = Buf(f"v{st.h}.{st.t}", 12, i, "v", st.h, st.t); st.bufs = [b]; tiles.append(b)
        elif st.kind == "Op": b = Buf(f"wo{st.h}.{st.t}", 12, i, "wo", st.h, st.t); st.bufs = [b]; tiles.append(b)
    def compute_before(i, n):
        s = i
        while n > 0 and s >= 0:
            s -= 1
            if s >= 0 and seq[s].nm > 0: n -= 1
        return s
    i = idx["X10.0"]; xbuf("xQ0", 12, i, i)
    i = idx["Qp1.9"]; xbuf("xQ1", 12, i + 1, i + 2)
    i = idx["M10.0"]; xbuf("m0", 1, i, i + 1)
    i = idx["PV0.6"]; xbuf("l0", 1, i, idx["QK1.1"])
    i = idx["QK1.0"]; xbuf("xO0a", 24, i, i + 2)
    i = idx["QK1.7"]; xbuf("m1", 1, i + 1, idx["M21.0"])
    i = idx["PV1.6"]; xbuf("l1", 1, i, idx["X40.0"])
    i = idx["X30.0"]; xbuf("xO1a", 24, i, i + 2)
    byname = {b.name: b for b in tiles}
    early = opt["early"]
    for b in tiles: b.mode = "a"
    for n, when in early.items():
        b = byname[n]; s0 = -1 if when == "first" else when
        assert reserve(b, s0, b.need, top=True), n
    last = -1; per_step = {}
    nfirst = opt["nfirst"]
    fixed = opt.get("fixed", {})
    if opt["xall"]:
        for b in tiles:
            if b.kind == "x": assert reserve(b, -1, b.need, top=True), b.name
    for b in tiles:
        if b.name in early or b.addr is not None: continue
        s = max(last, b.need - opt["maxlead"], -1)
        if b.kind in ("wq", "x") and b.h == 0 and b.t < nfirst: s = -1
        else: s = max(s, 0)
        if b.name in fixed: s = max(s, fixed[b.name])
        while s < b.need:
            ok = (s < 0 or seq[s].nm > 0)
            if ok and s >= 0 and per_step.get(s, 0) + b.units > opt["maxunits"]: ok = False
            if ok and reserve(b, s, b.need): break
            s += 1
        assert b.addr is not None, b.name
        per_step[b.issue] = per_step.get(b.issue, 0) + b.units
        last = b.issue
    issue_at = {}
    order = [byname[n] for n, w in early.items() if w == "first"] + [b for b in tiles if b.name not in early or early[b.name] != "first"]
    if opt.get("init_order"):
        io = [byname[n] for n in opt["init_order"]]
        order = io + [b for b in order if b not in io]
    for b in order: issue_at.setdefault(b.issue, []).append(b)
    for s_, lst in issue_at.items():
        if s_ >= 0: lst.sort(key=lambda b: (b.name in early and early[b.name] != "first"))
    if verbose:
        for i, st in enumerate(seq):
            print(i, st, [(b.name, b.issue, b.addr // UNIT) for b in st.bufs], "issues:", [b.name for b in issue_at.get(i, [])], "occ", sum(occ[i + 1]))
        print("prologue:", [b.name for b in issue_at.get(-1, [])])
    return seq, idx, X, issue_at

def gen(name, stamps=False, opt=None, verbose=False):
    o = dict(DEF); o.update(opt or {}); opt = o
    seq, idx, X, issue_at = plan(opt, verbose)
    NS = len(seq); PF = opt["PF"]
    ntf = "nt" if opt["nt"] else ""
    T0, T1, T2, T3 = sr(S_T0), sr(S_T1), sr(S_T2), sr(S_T3)
    a = Asm()
    stamp_n = [0]; stamp_names = []
    def stamp(nm="-", record=True):
        if not stamps: return
        k = stamp_n[0]; stamp_n[0] += 1
        if record: stamp_names.append(nm)
        a.raw(f"s_memtime s[{S_ST}:{S_ST+1}]", "smem")
        a.wait_lds_all()
        a.s("s_sub_u32", sr(S_ST), sr(S_ST), sr(S_TM))
        a.add(I(f"v_writelane_b32 v{V_ST + k // 64}, s{S_ST}, {k % 64}", "valu", [("s", S_ST)], [("v", V_ST + k // 64)]))

    a.s("s_cmp_ge_u32", "s2", 256)
    a.raw("s_cbranch_scc1 L_end", "branch")
    a.raw("s_load_dwordx16 s[4:19], s[0:1], 0", "smem")
    if stamps: a.raw(f"s_memtime s[{S_TM}:{S_TM+1}]", "smem")
    a.s("s_lshr_b32", sr(S_B), "s2", 4)
    a.s("s_and_b32", T0, "s2", 7); a.s("s_lshl_b32", T0, T0, 1); a.s("s_bfe_u32", T1, "s2", "0x10003"); a.s("s_or_b32", sr(S_J), T0, T1)
    tv = [f"v{V_S+i}" for i in range(20)]
    vl, vw, vi32, vhf, vg1, vrr, vcc_, vf, vlp, vqh, vrh, t0, t1, t2, t3, t4 = tv[:16]
    a.v("v_and_b32", vl, 63, "v0"); a.v("v_lshrrev_b32", vw, 6, "v0")
    a.v("v_readfirstlane_b32", sr(S_W), vw)
    a.v("v_lshlrev_b32", vr(V_L16), 4, vl)
    def f16_of(dst, r, tmp):
        a.v("v_and_b32", dst, 2, r); a.v("v_lshlrev_b32", dst, 5, dst)
        a.v("v_and_b32", tmp, 4, r); a.v("v_lshlrev_b32", tmp, 3, tmp); a.v("v_or_b32", dst, dst, tmp)
        a.v("v_and_b32", tmp, 8, r); a.v("v_lshlrev_b32", tmp, 1, tmp); a.v("v_or_b32", dst, dst, tmp)
    for n in range(6):
        a.v("v_add_u32", t0, n * 64, vl)
        a.v("v_mul_u32_u24", t1, 2731, t0); a.v("v_lshrrev_b32", t1, 16, t1)
        f16_of(vf, t1, t2)
        a.v("v_lshlrev_b32", t0, 4, t0); a.v("v_xor_b32", t0, t0, vf)
        a.v("v_subrev_u32", vr(V_KV + n), (n & 3) * 1024, t0)
        a.v("v_mul_u32_u24", t2, 12288 - 384, t1); a.v("v_add_u32", t2, t2, t0)
        a.v("v_subrev_u32", vr(V_WQ + n), (n & 3) * 1024, t2)
    for od, reg in ((0, V_E), (1, V_O)):
        a.v("v_lshrrev_b32", t1, 3, vl)
        if od: a.v("v_add_u32", t1, 8, t1)
        f16_of(vf, t1, t2)
        a.v("v_and_b32", t0, 7, vl); a.v("v_lshlrev_b32", t0, 4, t0); a.v("v_xor_b32", t0, t0, vf)
        a.v("v_mul_u32_u24", t1, 1280, t1); a.v("v_add_u32", vr(reg), t0, t1)
        if od: a.v("v_subrev_u32", vr(reg), 1024, vr(reg))
    a.s("s_and_b32", T0, sr(S_W), 1)
    a.s("s_mul_i32", sr(S_LR), T0, 12288); a.s("s_mul_i32", sr(S_LA), sr(S_W), 6144)
    a.s("s_mul_i32", sr(S_QR), T0, 32 * 12288); a.s("s_mul_i32", sr(S_QA), sr(S_W), 16 * 12288)
    a.s("s_mul_i32", sr(S_OR), T0, 96 * 1280); a.s("s_mul_i32", sr(S_OA), sr(S_W), 48 * 1280)
    a.s("s_lshl_b32", sr(S_XL), sr(S_W), 11); a.s("s_mul_i32", sr(S_XG), sr(S_W), 16 * 1280)
    a.s("s_lshr_b32", T0, sr(S_W), 1)
    a.s("s_lshl_b32", sr(S_RH128), T0, 7)
    a.s("s_lshl_b32", T1, T0, 8); a.s("s_sub_u32", sr(S_PVB), 128, T1)
    a.s("s_mul_i32", T1, T0, 384); a.s("s_sub_u32", sr(S_PVC), 256, T1)
    a.s("s_cmp_ge_u32", sr(S_B), 10); a.s("s_cselect_b32", T0, 10, 0); a.s("s_sub_u32", sr(S_ROT), sr(S_B), T0)
    if not opt["rot"]: a.s("s_mov_b32", sr(S_ROT), 0)
    a.raw("s_waitcnt lgkmcnt(0)", "wait")
    stamp("kernarg")
    def mk_srd(dst, ptr, off_lo=None, off_hi=None, size=0):
        if off_lo is None:
            a.s("s_mov_b32", sr(dst), sr(ptr)); a.s("s_and_b32", sr(dst + 1), sr(ptr + 1), "0xffff")
        else:
            a.s("s_add_u32", sr(dst), sr(ptr), off_lo)
            a.s("s_addc_u32", sr(dst + 1), sr(ptr + 1), off_hi if off_hi is not None else 0)
            a.s("s_and_b32", sr(dst + 1), sr(dst + 1), "0xffff")
        a.s("s_mov_b32", sr(dst + 2), size); a.s("s_mov_b32", sr(dst + 3), "0x20000")
    a.s("s_lshl_b32", T2, sr(S_B), 4); a.s("s_add_u32", T2, T2, sr(S_J))
    a.s("s_mul_i32", T0, T2, 393216); a.s("s_mul_hi_u32", T1, T2, 393216)
    mk_srd(S_K, 6, T0, T1, 393216); mk_srd(S_V, 8, T0, T1, 393216)
    a.s("s_mul_i32", T0, sr(S_J), 768); mk_srd(S_WQ, 10, T0, None, 0); a.s("s_sub_u32", sr(S_WQ + 2), 7864320, T0)
    a.s("s_mul_i32", T0, sr(S_B), 81920); mk_srd(S_X, 4, T0, None, 81920)

    def late_setup():
        a.v("v_and_b32", vi32, 31, vl); a.v("v_lshrrev_b32", vhf, 5, vl)
        a.v("v_bfe_u32", vg1, vl, 4, 1); a.v("v_bfe_u32", vrr, vl, 2, 2); a.v("v_and_b32", vcc_, 3, vl)
        a.v("v_and_b32", vqh, 1, vw); a.v("v_lshrrev_b32", vrh, 1, vw)
        a.v("v_lshlrev_b32", vlp, 5, vg1); a.v("v_lshlrev_b32", t0, 3, vcc_); a.v("v_add_u32", vlp, vlp, t0)
        f16_of(vf, vi32, t2)
        a.v("v_lshlrev_b32", t0, 4, vhf); a.v("v_xor_b32", t0, t0, vf)
        a.v("v_lshlrev_b32", t1, 5, vrh); a.v("v_add_u32", t1, t1, vi32); a.v("v_mul_u32_u24", t1, 384, t1); a.v("v_add_u32", vr(V_BK), t0, t1)
        a.v("v_lshlrev_b32", t1, 5, vqh); a.v("v_add_u32", t1, t1, vi32); a.v("v_lshlrev_b32", t1, 7, t1); a.v("v_add_u32", vr(V_BX), t0, t1)
        a.v("v_and_b32", vf, 2, vrr); a.v("v_lshlrev_b32", vf, 5, vf); a.v("v_lshlrev_b32", t2, 5, vhf); a.v("v_or_b32", vf, vf, t2)
        a.v("v_lshlrev_b32", t0, 6, vrh); a.v("v_add_u32", t0, t0, vlp); a.v("v_xor_b32", t0, t0, vf)
        a.v("v_lshlrev_b32", t1, 2, vhf); a.v("v_add_u32", t1, t1, vrr)
        a.v("v_lshlrev_b32", t2, 7, t1); a.v("v_add_u32", vr(V_BO), t0, t2)
        a.v("v_lshlrev_b32", t2, 5, vrh); a.v("v_add_u32", t1, t1, t2); a.v("v_mul_u32_u24", t1, 384, t1)
        a.v("v_add_u32", t1, t1, t0); a.v("v_lshlrev_b32", t2, 7, vrh); a.v("v_add_u32", vr(V_BV), t1, t2)
        a.v("v_and_b32", vf, 2, vrr); a.v("v_lshlrev_b32", vf, 5, vf); a.v("v_lshlrev_b32", t2, 4, vhf); a.v("v_or_b32", vf, vf, t2)
        a.v("v_lshlrev_b32", t0, 6, vrh); a.v("v_add_u32", t0, t0, vlp); a.v("v_xor_b32", t0, t0, vf)
        a.v("v_lshlrev_b32", t1, 3, vhf); a.v("v_add_u32", t1, t1, vrr); a.v("v_mul_u32_u24", t1, 384, t1)
        a.v("v_add_u32", t1, t1, t0); a.v("v_lshlrev_b32", t2, 7, vrh); a.v("v_add_u32", vr(V_BQ), t1, t2)
        a.v("v_mul_u32_u24", t0, 12288, vqh); a.v("v_add_u32", vr(V_XA + 1), t0, vr(V_L16))
        a.v("v_mul_u32_u24", t1, 6144, vrh); a.v("v_add_u32", vr(V_XA), vr(V_XA + 1), t1)
        a.v("v_mul_u32_u24", t0, 12288, vw); a.v("v_add_u32", vr(V_XA + 2), t0, vr(V_L16))
        a.v("v_xor_b32", t0, 2, vw); a.v("v_mul_u32_u24", t0, 12288, t0); a.v("v_add_u32", vr(V_XP), t0, vr(V_L16))
        a.s("s_mul_i32", T0, sr(S_J), 491520); mk_srd(S_WO, 12, T0, None, 491520)
        a.s("s_mul_i32", T0, sr(S_B), 81920); mk_srd(S_OUT, 14, T0, None, 81920)
        a.s("s_mul_i32", T0, sr(S_B), 16 * 81920); mk_srd(S_P, 18, T0, None, 16 * 81920)
        a.s("s_lshl_b32", T0, sr(S_B), 10); a.s("s_add_u32", T0, T0, 0x2000000); mk_srd(S_F, 18, T0, None, 1024)
        mk_srd(S_DBG, 16, None, None, 256)
        a.s("s_mov_b32", sr(S_C), hex(f32bits(math.log2(math.e) / math.sqrt(192.0))))
        a.s("s_mul_i32", sr(S_PB), sr(S_J), 81920); a.s("s_lshl_b32", T0, sr(S_W), 11); a.s("s_add_u32", sr(S_PB), sr(S_PB), T0)
    if stamps:
        a.v("v_mov_b32", vr(V_ST + 1), 0)

    def rot_tile(t, dst):
        a.s("s_add_u32", dst, sr(S_ROT), t); a.s("s_cmp_ge_u32", dst, 10); a.s("s_cselect_b32", T3, 10, 0); a.s("s_sub_u32", dst, dst, T3)

    base_stamp = stamp_n[0]
    def program(role):
        a.vm_issued = 0; a.vm_done = 0; a.lds_issued = 0; a.lds_done = 0
        stamp_n[0] = base_stamp
        rec = (role == 0)
        def st_(nm): stamp(nm, rec)
        toks = {}
        def mine(b): return b.mode == role or b.mode == "a"
        def dma_items(b):
            if not mine(b): return []
            items = []; base = b.addr; allm = (b.mode == "a")
            np_ = 6 if allm else 12
            if b.kind in ("k", "v", "wq"):
                srdn = {"k": S_K, "v": S_V, "wq": S_WQ}[b.kind]; vo = V_WQ if b.kind == "wq" else V_KV
                fl = ntf if b.kind != "wq" else opt.get("wfl", "")
                gstride = 16 * 12288 if b.kind == "wq" else 6144
                lds0 = S_LA if allm else S_LR
                def mk(m):
                    g, mm = divmod(m, 6)
                    def f():
                        if m == 0:
                            if b.kind == "wq":
                                rot_tile(b.t, sr(S_SOFF)); a.s("s_mul_i32", sr(S_SOFF), sr(S_SOFF), 64 * 12288)
                                a.s("s_add_u32", sr(S_SOFF), sr(S_SOFF), sr(S_QA if allm else S_QR))
                                if b.h: a.s("s_add_u32", sr(S_SOFF), sr(S_SOFF), 384)
                            else: a.s("s_add_u32", sr(S_SOFF), sr(lds0), b.h * 196608 + b.t * 24576)
                        if m == 6: a.s("s_add_u32", sr(S_SOFF), sr(S_SOFF), gstride)
                        if mm in (0, 4): a.s("s_add_u32", "m0", sr(lds0), base + g * 6144 + (4096 if mm == 4 else 0))
                        a.dma(vr(vo + mm), srd(srdn), sr(S_SOFF), (mm & 3) * 1024, fl)
                        if m == np_ - 1: toks[b.name] = a.vm_issued
                    return f
                for m in range(np_): items.append(mk(m))
            elif b.kind == "wo":
                def mk(m):
                    def f():
                        if m == 0:
                            rot_tile(b.t, sr(S_SOFF)); a.s("s_lshl_b32", sr(S_SOFF), sr(S_SOFF), 7)
                            a.s("s_add_u32", sr(S_SOFF), sr(S_SOFF), sr(S_OA if allm else S_OR))
                            if b.h: a.s("s_add_u32", sr(S_SOFF), sr(S_SOFF), 245760)
                        if m % 4 == 0: a.s("s_add_u32", "m0", sr(S_LA if allm else S_LR), base + m * 1024)
                        d = (m >> 1) * 20480 - (m & 3) * 1024 + (1024 if m & 1 else 0)
                        if d: a.s("s_add_u32", T2, sr(S_SOFF), d); so = T2
                        else: so = sr(S_SOFF)
                        a.dma(vr(V_O if m & 1 else V_E), srd(S_WO), so, (m & 3) * 1024, opt.get("wfl", ""))
                        if m == np_ - 1: toks[b.name] = a.vm_issued
                    return f
                for m in range(np_): items.append(mk(m))
            elif b.kind == "x":
                def mk(m):
                    def f():
                        if m == 0:
                            rot_tile(b.t, sr(S_R8)); a.s("s_lshl_b32", sr(S_R8), sr(S_R8), 7); a.s("s_add_u32", sr(S_R8), sr(S_R8), sr(S_XG))
                            a.s("s_add_u32", "m0", sr(S_XL), base)
                        a.dma(vr(V_O if m & 1 else V_E), srd(S_X), sr(S_R8), m * 1024, opt.get("xfl", ""))
                        if m == 1: toks[b.name] = a.vm_issued
                    return f
                for m in range(2): items.append(mk(m))
            return items

        pro = issue_at.get(-1, [])
        n1 = opt["ninit"]
        if opt["xpf"]:
            a.v("v_lshlrev_b32", vr(V_T), 3, vr(V_L16))
            a.s("s_mul_i32", T2, sr(S_W), 20480)
            for k in range(3):
                a.bload("buffer_load_dword", vr(V_DUM), vr(V_T), srd(S_X), T2, 0, "")
                if k < 2: a.s("s_add_u32", T2, T2, 8192)
        for b in pro[:n1]:
            for f in dma_items(b): f()
        st_("dma_issued")
        late_setup()
        for b in pro[n1:]:
            for f in dma_items(b): f()
        def wpf_items():
            p0, p1, p2 = vr(V_T + 13), vr(V_T + 14), vr(V_T + 15)
            def f1():
                a.v("v_min_u32", p0, 239, "v0")
                a.v("v_mul_u32_u24", p1, 10923, p0); a.v("v_lshrrev_b32", p1, 16, p1)
                a.v("v_mul_u32_u24", p2, 6, p1); a.v("v_sub_u32", p2, p0, p2); a.v("v_lshlrev_b32", p2, 7, p2)
                a.v("v_mul_u32_u24", p1, 12288, p1); a.v("v_add_u32", p1, p1, p2)
                a.s("s_mul_i32", T2, sr(S_B), 40 * 12288)
                a.bload("buffer_load_dword", vr(V_DUM), p1, srd(S_WQ), T2, 0, "")
            def f2():
                a.v("v_min_u32", p0, 239, "v0"); a.v("v_lshlrev_b32", p2, 7, p0)
                a.s("s_mul_i32", T3, sr(S_B), 30720)
                a.bload("buffer_load_dword", vr(V_DUM), p2, srd(S_WO), T3, 0, "")
            return f1, f2
        if opt["cpf"]:
            a.s("s_cmp_lg_u32", sr(S_W), 3); a.raw("s_cbranch_scc1 L_nocpf", "branch")
            a.raw(f"s_getpc_b64 s[{S_CP}:{S_CP+1}]", "salu")
            a.label("L_pc")
            a.raw(f"s_sub_u32 s{S_CP}, s{S_CP}, L_pc-{KN}", "salu"); a.raw(f"s_subb_u32 s{S_CP+1}, s{S_CP+1}, 0", "salu")
            a.raw(f"s_and_b32 s{S_CP+1}, s{S_CP+1}, 0xffff", "salu"); a.raw(f"s_mov_b32 s{S_CP+2}, L_codeend-{KN}", "salu")
            a.raw(f"s_mov_b32 s{S_CP+3}, 0x20000", "salu"); a.raw("s_bfe_u32 s80, s2, 0x50003", "salu")
            a.raw("s_mul_i32 s80, s80, CPF_LINES*128", "salu")
            a.v("v_lshlrev_b32", vr(V_T), 3, vr(V_L16))
            a.nop(2)
            a.raw(f"buffer_load_dword v{V_DUM}, v{V_T}, s[{S_CP}:{S_CP+3}], s80 offen", "vmem_load")
            a.label("L_nocpf")
        if role == 0:
            a.s("s_or_b32", T0, "s2", sr(S_W)); a.s("s_cmp_lg_u32", T0, 0)
            a.raw("s_cbranch_scc1 L_nononce", "branch")
            a.raw(f"s_memrealtime s[{S_NONCE}:{S_NONCE+1}]", "smem"); a.raw("s_waitcnt lgkmcnt(0)", "wait")
            a.s("s_or_b32", sr(S_NONCE), sr(S_NONCE), 1)
            a.v("v_mov_b32", vr(V_T + 2), sr(S_NONCE)); a.v("v_mov_b32", vr(V_T + 3), sr(S_NONCE + 1)); a.v("v_mov_b32", vr(V_T + 4), 0)
            a.raw(f"buffer_store_dwordx2 v[{V_T+2}:{V_T+3}], v{V_T+4}, {srd(S_DBG)}, 0 offen sc1", "vmem_store")
            a.label("L_nononce")

        def addr_items(i):
            st = seq[i]; W = V_W; its = []; sb = st.bufs[0].addr
            if st.kind == "QK":
                its.append(lambda: a.v("v_add_u32", vr(W), sb, vr(V_BK)))
                for k in (1, 2, 3): its.append(lambda k=k: a.v("v_xor_b32", vr(W + k), 32 * k, vr(W)))
            elif st.kind == "PV":
                its.append(lambda: a.v("v_add_u32", vr(W), sb, vr(V_BV)))
                its.append(lambda: a.v("v_xad_u32", vr(W + 1), vr(W), 64, sr(S_RH128)))
                its.append(lambda: a.v("v_xad_u32", vr(W + 2), vr(W), 64, sr(S_PVB)))
                its.append(lambda: a.v("v_add_u32", vr(W + 3), sr(S_PVC), vr(W)))
                for k in range(4): its.append(lambda k=k: a.v("v_xor_b32", vr(W + 4 + k), 16, vr(W + k)))
            elif st.kind == "Qp":
                its.append(lambda: a.v("v_add_u32", vr(W), sb, vr(V_BQ)))
                its.append(lambda: a.v("v_xad_u32", vr(W + 1), vr(W), 64, sr(S_RH128)))
                for k in range(2): its.append(lambda k=k: a.v("v_xor_b32", vr(W + 2 + k), 32, vr(W + k)))
                if st.h == 0:
                    sx = st.bufs[1].addr
                    its.append(lambda: a.v("v_add_u32", vr(W + 4), sx, vr(V_BX)))
                    for k in (1, 2, 3): its.append(lambda k=k: a.v("v_xor_b32", vr(W + 4 + k), 32 * k, vr(W + 4)))
            elif st.kind == "Op":
                its.append(lambda: a.v("v_add_u32", vr(W), sb, vr(V_BO)))
                its.append(lambda: a.v("v_xor_b32", vr(W + 1), 16, vr(W)))
            return its
        def frag_spec(i, n):
            st = seq[i]; W = V_W; xb = []
            if st.kind == "QK":
                reads = [("ds_read_b128", 0, 4, vr(W + (n & 3)), 128 * (n >> 2))]
                D = rs("v", V_S + 16 * st.t, 16); B = rs("v", V_Q + 4 * n, 4); C = "0" if n == 0 else D
            elif st.kind == "PV":
                u, tau = n // 6, n % 6
                reg, add = {0: (0, 0), 1: (1, 0), 2: (0, 128), 3: (2, 0), 4: (3, 0), 5: (2, 128)}[tau]
                reads = [("ds_read_b64_tr_b16", 2 * hf, 2, vr(W + reg + 4 * hf), (16 * u + 8 * hf) * 384 + add) for hf in (0, 1)]
                D = rs("a", A_O(st.h) + 16 * tau, 16); B = rs("v", V_S + 16 * st.t + 4 * u, 4)
                C = "0" if (st.t == 0 and u == 0) else D
            elif st.kind == "Qp":
                ks, T = n // 3, n % 3
                reg, add = {0: (0, 0), 1: (1, 0), 2: (0, 128)}[T]
                reads = [("ds_read_b64_tr_b16", 2 * hf, 2, vr(W + reg + 2 * hf), (16 * ks + 4 * hf) * 384 + add) for hf in (0, 1)]
                D = rs("a", A_QACC + 16 * T, 16)
                xr = A_X + 4 * (st.t * 4 + ks); B = rs("a", xr, 4)
                if T == 0 and st.h == 0: xb = [("ds_read_b128", rs("a", xr, 4), vr(W + 4 + ks), 0)]
                C = "0" if (st.t == 0 and ks == 0) else D
            else:
                reads = [("ds_read_b64_tr_b16", 2 * hf, 2, vr(W + hf), (16 * n + 8 * hf) * 128) for hf in (0, 1)]
                D = rs("a", A_OUT + 16 * st.t, 16)
                B = rs("a", A_OF + 4 * n, 4) if (st.h == 0 and i < idx["M21.0"]) else rs("v", V_Q + 4 * n, 4)
                C = "0" if (st.h == 0 and n == 0) else D
            return reads, xb, D, B, C
        gstart = {}; g = 0
        for i, st in enumerate(seq): gstart[i] = g; g += st.nm
        frag_tok = {}
        def issue_frag(i, n):
            reads, xb, D, B, C = frag_spec(i, n)
            gi = gstart[i] + n; rb = V_A + 4 * (gi % NRING); tok = None
            for (op, dst, addr, off) in xb: a.ds_read(op, dst, addr, off)
            for (op, ro, cnt, addr, off) in reads: tok = a.ds_read(op, rs("v", rb + ro, cnt), addr, off)
            frag_tok[gi] = tok

        def max_items(t, first):
            regs = [V_S + 16 * t + k for k in range(16)]; its = []
            if first:
                its.append(lambda: a.v("v_max3_f32", vr(V_M), vr(regs[0]), vr(regs[1]), vr(regs[2])))
                rest = regs[3:]
                for k in range(0, 12, 2): its.append(lambda k=k: a.v("v_max3_f32", vr(V_M), vr(V_M), vr(rest[k]), vr(rest[k + 1])))
                its.append(lambda: a.v("v_max_f32", vr(V_M), vr(V_M), vr(rest[12])))
            else:
                for k in range(0, 16, 2): its.append(lambda k=k: a.v("v_max3_f32", vr(V_M), vr(V_M), vr(regs[k]), vr(regs[k + 1])))
            return its
        def xhalf(reg, op):
            x0, x1 = vr(V_T), vr(V_T + 1)
            a.v("v_mov_b32", x0, vr(reg)); a.v("v_mov_b32", x1, vr(reg))
            a.v("v_permlane32_swap_b32", x0, x1); a.v(op, vr(reg), x0, x1)
        def scr_addr(dst, partner, buf):
            a.v("v_lshrrev_b32", dst, 2, vr(V_L16))
            a.s("s_lshl_b32", T2, sr(S_W), 8)
            if partner: a.s("s_xor_b32", T2, T2, 512)
            a.s("s_add_u32", T2, T2, buf.addr)
            a.v("v_add_u32", dst, T2, dst)
        def m_send(h):
            def f():
                xhalf(V_M, "v_max_f32"); scr_addr(vr(V_T + 2), False, X[f"m{h}"])
                a.ds_write("ds_write_b32", vr(V_T + 2), vr(V_M)); a.wait_lds_all()
            return f
        def m_recv(h):
            def f():
                scr_addr(vr(V_T + 2), True, X[f"m{h}"])
                tok = a.ds_read("ds_read_b32", vr(V_T + 3), vr(V_T + 2)); a.wait_lds(tok)
                a.v("v_max_f32", vr(V_M), vr(V_M), vr(V_T + 3)); a.v("v_mul_f32", vr(V_MC), sr(S_C), vr(V_M)); a.v("v_mov_b32", vr(V_L), 0)
            return f
        def p_items(t):
            base = V_S + 16 * t; fs = []; gs = []
            for k in range(0, 16, 2):
                r0 = base + k
                def f(r0=r0):
                    a.v("v_fma_f32", vr(r0), vr(r0), sr(S_C), f"-v{V_MC}"); a.v("v_fma_f32", vr(r0 + 1), vr(r0 + 1), sr(S_C), f"-v{V_MC}")
                    a.v("v_exp_f32", vr(r0), vr(r0)); a.v("v_exp_f32", vr(r0 + 1), vr(r0 + 1))
                def g_(r0=r0, k=k):
                    a.v("v_add_f32", vr(V_L), vr(V_L), vr(r0)); a.v("v_add_f32", vr(V_L), vr(V_L), vr(r0 + 1))
                    a.v("v_cvt_pk_bf16_f32", vr(base + k // 2), vr(r0), vr(r0 + 1))
                fs.append(f); gs.append(g_)
            out = []
            for k in range(8):
                out.append(fs[k])
                if k >= 1: out.append(gs[k - 1])
            out.append(gs[7]); return out
        def l_send(h):
            def f():
                xhalf(V_L, "v_add_f32"); scr_addr(vr(V_T + 2), False, X[f"l{h}"])
                a.ds_write("ds_write_b32", vr(V_T + 2), vr(V_L)); a.wait_lds_all()
            return f
        def q_write_items(buf):
            its = []
            for T in range(3):
                for u in range(2):
                    def f(T=T, u=u):
                        t = [vr(V_T + k) for k in range(8)]; q = [vr(V_T + 8 + k) for k in range(4)]
                        for k in range(8): a.v("v_accvgpr_read_b32", t[k], f"a{A_QACC + 16*T + 8*u + k}")
                        for k in range(4): a.v("v_cvt_pk_bf16_f32", q[k], t[2 * k], t[2 * k + 1])
                        a.v("v_permlane32_swap_b32", q[0], q[2]); a.v("v_permlane32_swap_b32", q[1], q[3])
                        a.v("v_add_u32", t[0], buf.addr, vr(V_XA))
                        a.ds_write("ds_write_b128", t[0], rs("v", V_T + 8, 4), (2 * T + u) * 1024)
                    its.append(f)
            its.append(lambda: a.wait_lds_all()); return its
        def frags_read_items(buf, dkind, dbase):
            its = [lambda: a.v("v_add_u32", vr(V_T + 12), buf.addr, vr(V_XA + 1))]
            for s_ in range(12): its.append(lambda s_=s_: a.ds_read("ds_read_b128", rs(dkind, dbase + 4 * s_, 4), vr(V_T + 12), s_ * 1024))
            its.append(lambda: a.wait_lds_all()); return its
        def o_send_items(buf, h):
            its = [lambda: a.v("v_add_u32", vr(V_T + 12), buf.addr, vr(V_XA + 2))]
            for k in range(12): its.append(lambda k=k: a.ds_write("ds_write_b128", vr(V_T + 12), rs("a", A_O(h) + 48 + 4 * k, 4), k * 1024))
            its.append(lambda: a.wait_lds_all()); return its
        def o_comb_items(bufa, lbuf, RB, h):
            its = []
            def f0():
                a.v("v_add_u32", vr(V_T + 12), bufa.addr, vr(V_XP))
                scr_addr(vr(V_T + 13), True, lbuf)
                a.ds_read("ds_read_b32", vr(V_T + 14), vr(V_T + 13))
                for k in range(12): a.ds_read("ds_read_b128", rs("v", RB + 4 * k, 4), vr(V_T + 12), k * 1024)
                a.wait_lds_all()
                a.v("v_add_f32", vr(V_RINV), vr(V_L), vr(V_T + 14)); a.v("v_rcp_f32", vr(V_RINV), vr(V_RINV))
            its.append(f0)
            for fr in range(6):
                def f(fr=fr):
                    t = [vr(V_T + k) for k in range(8)]; q = [vr(V_T + 8 + k) for k in range(4)]
                    for k in range(8): a.v("v_accvgpr_read_b32", t[k], f"a{A_O(h) + 8*fr + k}")
                    for k in range(8): a.v("v_add_f32", t[k], t[k], vr(RB + 8 * fr + k))
                    for k in range(8): a.v("v_mul_f32", t[k], t[k], vr(V_RINV))
                    for k in range(4): a.v("v_cvt_pk_bf16_f32", q[k], t[2 * k], t[2 * k + 1])
                    a.ds_write("ds_write_b128", vr(V_T + 12), rs("v", V_T + 8, 4), fr * 1024)
                its.append(f)
            its.append(lambda: a.wait_lds_all()); return its
        def ofrags_read_items(buf, dkind, dbase):
            its = [lambda: a.v("v_add_u32", vr(V_T + 12), buf.addr, vr(V_XA + 1))]
            for s_ in range(12):
                off = (24576 + s_ * 1024) if s_ < 6 else (s_ - 6) * 1024
                its.append(lambda s_=s_, off=off: a.ds_read("ds_read_b128", rs(dkind, dbase + 4 * s_, 4), vr(V_T + 12), off))
            its.append(lambda: a.wait_lds_all()); return its
        ptok = {}
        PKB = V_S
        def pconv_items(t):
            tb = V_S + 80 + 16 * (t & 1)
            def f1():
                for k in range(16): a.v("v_accvgpr_read_b32", vr(tb + k), f"a{A_OUT + 16*t + k}")
            def f2():
                for k in range(8): a.v("v_cvt_pk_bf16_f32", vr(PKB + 8 * t + k), vr(tb + 2 * k), vr(tb + 2 * k + 1))
            return [f1, f2]
        def pst_item(t):
            def f3():
                rot_tile(t, T2); a.s("s_lshl_b32", T2, T2, 13); a.s("s_add_u32", T2, T2, sr(S_PB))
                a.bstore("buffer_store_dwordx4", rs("v", PKB + 8 * t, 4), vr(V_L16), srd(S_P), T2, 0, "sc1")
                ptok[t] = a.bstore("buffer_store_dwordx4", rs("v", PKB + 8 * t + 4, 4), vr(V_L16), srd(S_P), T2, 1024, "sc1")
            return f3
        side = {i: [] for i in range(NS + 1)}
        def ix(n): return idx[n]
        for i, st in enumerate(seq):
            if st.kind == "QK":
                if not (st.h == 0 and st.t == 7): side[i + 1] += max_items(st.t, st.t == 0)
                if st.t == 7 and st.h == 1: side[i + 1] += [m_send(1)]
            if st.kind == "PV" and st.t < 7:
                side[i] += p_items(st.t + 1)
                if st.t == 6: side[i] += [l_send(st.h)]
            if st.kind == "Op" and st.h == 1: side[i + 1] += pconv_items(st.t)
        side[ix("Qp1.9") + 1] = q_write_items(X["xQ1"]) + side[ix("Qp1.9") + 1]
        side[ix("Qp1.9") + 2] = frags_read_items(X["xQ1"], "v", V_Q) + side[ix("Qp1.9") + 2]
        side[ix("Op1.0")] = [nonce_load] + side[ix("Op1.0")]
        side[ix("Op1.3")] = [nonce_check] + side[ix("Op1.3")]
        for stp, blks in opt["st_sched"].items():
            k = NS if stp == "end" else ix(stp)
            side[k] = side[k] + [pst_item(t) for t in blks]
        if opt["wq_pf"] is not None: side[opt["wq_pf"]] = [wpf_items()[0]] + side[opt["wq_pf"]]
        if opt["wo_pf"] is not None: side[opt["wo_pf"]] = [wpf_items()[1]] + side[opt["wo_pf"]]
        side[ix("QK1.0")] = o_send_items(X["xO0a"], 0) + side[ix("QK1.0")]
        side[ix("QK1.1")] += o_comb_items(X["xO0a"], X["l0"], V_S + 64, 0)
        side[ix("QK1.2")] += ofrags_read_items(X["xO0a"], "a", A_OF)

        landed = set(); prefetched = {}
        def wait_tiles(i):
            tk = [toks[b.name] for b in seq[i].bufs if mine(b)]
            if tk: a.wait_vm(max(tk))
        def can_ahead(i, j): return all(b.issue <= i - opt.get("ahead_min", 2) for b in seq[j].bufs)
        for i, st in enumerate(seq):
            a.comment(f"---- step {i}: {st}")
            st_(repr(st))
            if st.nm == 0:
                if st.kind == "X1":
                    a.barrier()
                    for f in q_write_items(X["xQ0"]): f()
                    a.barrier()
                    for f in frags_read_items(X["xQ0"], "v", V_Q): f()
                elif st.kind == "M1":
                    a.barrier()
                    for f in max_items(7, False): f()
                    m_send(0)()
                elif st.kind == "M2":
                    a.barrier(); m_recv(st.h)()
                    if st.h == 1:
                        for k in range(48): a.v("v_accvgpr_read_b32", vr(V_Q + k), f"a{A_OF + k}")
                    for f in p_items(0): f()
                elif st.kind == "X3":
                    a.barrier()
                    for f in o_send_items(X["xO1a"], 1): f()
                elif st.kind == "X4":
                    a.barrier()
                    for f in o_comb_items(X["xO1a"], X["l1"], V_S + 64, 1): f()
                continue
            if i not in landed: wait_tiles(i); landed.add(i)
            j = i + 1 if (i + 1 < NS and seq[i + 1].nm > 0) else None
            ahead = j is not None and can_ahead(i, j)
            if ahead: wait_tiles(j)
            a.barrier()
            if ahead: landed.add(j)
            if repr(st) == "Op1.0":
                for f in ofrags_read_items(X["xO1a"], "v", V_Q): f()
            n0 = prefetched.get(i, 0)
            if n0 == 0:
                for f in addr_items(i): f()
                for n in range(min(PF, st.nm)): issue_frag(i, n)
                n0 = min(PF, st.nm)
            dm = []
            for b in issue_at.get(i, []): dm += dma_items(b)
            sd = list(side[i]); queue = []
            ratio = max(1, round(len(sd) / max(1, len(dm)))) if dm else 1
            if st.kind == "Op" and st.h == 1:
                queue = dm + sd; dm = []; sd = []
            ndm_front = 0
            if opt["front"] and dm:
                ndm_front = len(dm); queue = dm + sd; dm = []; sd = []
            while dm or sd:
                if dm: queue.append(dm.pop(0))
                for _ in range(ratio):
                    if sd: queue.append(sd.pop(0))
            nq = len(queue); done = 0; issued = n0
            for n in range(st.nm):
                if issued < st.nm: issue_frag(i, issued); issued += 1
                elif ahead:
                    k = issued - st.nm
                    if k == 0 and prefetched.get(j, 0) == 0:
                        for f in addr_items(j): f()
                    if k < min(PF, seq[j].nm): issue_frag(j, k); prefetched[j] = k + 1; issued += 1
                gi = gstart[i] + n
                a.wait_lds(frag_tok[gi])
                reads, xb, D, B, C = frag_spec(i, n)
                a.mfma(D, rs("v", V_A + 4 * (gi % NRING), 4), B, C, shape="32x32x16")
                target = math.ceil(nq * (n + 1) / st.nm)
                if ndm_front: target = max(target, min(ndm_front, math.ceil(ndm_front * (n + 1) / 7)))
                while done < min(target, nq): queue[done](); done += 1
            assert done == nq
        ptok_ref[0] = ptok
        tail(side[NS], st_)

    VN = 254
    VFA = 250
    VFO = 249
    LB = 128; ACC = 240
    vt = [vr(V_T + k) for k in range(8)]
    tokA = [None]
    def nonce_load():
        a.v("v_mov_b32", vr(VFO), 0)
        tokA[0] = a.bload("buffer_load_dwordx2", rs("v", VN, 2), vr(VFO), srd(S_DBG), 0, 0, "sc1")
    def flag_store(stage):
        a.s("s_lshl_b32", T0, sr(S_J), 3); a.s("s_lshl_b32", T1, sr(S_W), 7); a.s("s_add_u32", T0, T0, T1); a.v("v_mov_b32", vt[0], T0)
        a.bstore("buffer_store_dwordx2", rs("v", VN, 2), vt[0], srd(S_F), 0, stage * 512, "sc1")
    def nonce_check():
        a.wait_vm(tokA[0])
        a.v("v_readfirstlane_b32", T0, vr(VN)); a.nop(2)
        a.s("s_cmp_lg_u32", T0, 0); a.raw("s_cbranch_scc1 L_nok", "branch")
        a.s("s_mov_b32", T1, 0); a.v("v_mov_b32", vt[0], 0)
        a.label("L_nonce")
        a.s("s_add_u32", T1, T1, 1); a.s("s_cmp_gt_u32", T1, 100000); a.raw("s_cbranch_scc1 L_nok", "branch")
        a.raw(f"buffer_load_dwordx2 v[{VN}:{VN+1}], {vt[0]}, {srd(S_DBG)}, 0 offen sc1", "vmem_load")
        a.raw("s_waitcnt vmcnt(0)", "wait")
        a.v("v_readfirstlane_b32", T0, vr(VN)); a.nop(2)
        a.s("s_cmp_eq_u32", T0, 0); a.raw("s_cbranch_scc1 L_nonce", "branch")
        a.label("L_nok")
    def flags_ok(regs, fail_label):
        a.add(I(f"v_cmp_eq_u32 vcc, v{regs}, v{VN}", "valu", [("v", regs), ("v", VN)], [("vcc", 0)]))
        a.add(I(f"v_cmp_eq_u32 s[{S_SAVE}:{S_SAVE+1}], v{regs+1}, v{VN+1}", "valu", [("v", regs + 1)], [("s", S_SAVE), ("s", S_SAVE + 1)]))
        a.nop(2)
        a.s("s_and_b64", f"s[{S_SAVE}:{S_SAVE+1}]", f"s[{S_SAVE}:{S_SAVE+1}]", "vcc")
        a.raw(f"s_cmp_eq_u64 s[{S_SAVE}:{S_SAVE+1}], -1", "salu")
        a.raw(f"s_cbranch_scc0 {fail_label}", "branch")
    def poll(stage, tag):
        a.s("s_bfe_u32", T0, sr(S_CH), "0x20001"); a.s("s_lshl_b32", T0, T0, 7); a.s("s_add_u32", sr(S_CP), T0, stage * 512)
        a.v("v_lshrrev_b32", vr(VFO), 1, vr(V_L16)); a.v("v_and_b32", vr(VFO), 127, vr(VFO))
        a.s("s_mov_b32", T1, 0)
        a.label(f"L_poll{tag}")
        a.s("s_add_u32", T1, T1, 1); a.s("s_cmp_gt_u32", T1, 200000); a.raw(f"s_cbranch_scc1 L_pok{tag}", "branch")
        a.raw(f"buffer_load_dwordx2 v[{VFA}:{VFA+1}], v{VFO}, {srd(S_F)}, s{S_CP} offen sc1", "vmem_load")
        a.raw("s_waitcnt vmcnt(0)", "wait")
        flags_ok(VFA, f"L_poll{tag}")
        a.label(f"L_pok{tag}")
    S_CH = S_R8
    def chunk_addr(cidx_s, pos0):
        a.s("s_lshr_b32", T2, cidx_s, 3); a.s("s_add_u32", T2, T2, sr(S_ROT))
        if pos0: a.s("s_add_u32", T2, T2, pos0)
        a.s("s_cmp_ge_u32", T2, 10); a.s("s_cselect_b32", T3, 10, 0); a.s("s_sub_u32", T2, T2, T3)
        a.s("s_lshl_b32", T2, T2, 3); a.s("s_and_b32", T3, cidx_s, 7); a.s("s_add_u32", sr(S_CH), T2, T3)
        a.s("s_lshl_b32", T2, sr(S_CH), 10)
    def red_loads():
        for p in range(16):
            a.s("s_add_u32", T3, T2, p * 81920)
            a.raw(f"buffer_load_dwordx4 v[{LB+4*p}:{LB+4*p+3}], v{V_L16}, {srd(S_P)}, {T3} offen sc1", "vmem_load")
    def red_sum_store():
        a.s("s_mov_b32", sr(S_SAVE), "0x3f80"); a.s("s_mov_b32", sr(S_SAVE + 1), "0x3f800000")
        for p in range(16):
            a.raw(f"s_waitcnt vmcnt({15-p})", "wait")
            for k in range(4):
                lo, hi = vr(ACC + 2 * k), vr(ACC + 2 * k + 1); r = vr(LB + 4 * p + k)
                if p == 0: a.v("v_lshlrev_b32", lo, 16, r); a.v("v_and_b32", hi, "0xffff0000", r)
                else: a.v("v_dot2c_f32_bf16", lo, sr(S_SAVE), r); a.v("v_dot2c_f32_bf16", hi, sr(S_SAVE + 1), r)
        cS = sr(S_CH)
        a.s("s_lshr_b32", T2, cS, 3); a.s("s_lshl_b32", T2, T2, 7)
        a.s("s_bfe_u32", T3, cS, "0x10002"); a.s("s_lshl_b32", T3, T3, 6); a.s("s_add_u32", T2, T2, T3)
        a.s("s_and_b32", T3, cS, 1); a.s("s_lshl_b32", T3, T3, 5); a.s("s_add_u32", T2, T2, T3)
        a.s("s_bfe_u32", T3, cS, "0x10001"); a.s("s_mul_i32", T3, T3, 32 * 1280); a.s("s_add_u32", T2, T2, T3)
        PK = V_T + 8
        for k in range(4): a.v("v_cvt_pk_bf16_f32", vr(PK + k), vr(ACC + 2 * k), vr(ACC + 2 * k + 1))
        a.v("v_permlane32_swap_b32", vr(PK), vr(PK + 2)); a.v("v_permlane32_swap_b32", vr(PK + 1), vr(PK + 3))
        a.v("v_and_b32", vt[4], 31, "v0"); a.v("v_mul_u32_u24", vt[4], 1280, vt[4])
        a.v("v_bfe_u32", vt[5], "v0", 5, 1); a.v("v_lshlrev_b32", vt[5], 4, vt[5]); a.v("v_add_u32", vt[4], vt[4], vt[5])
        a.add(I(f"buffer_store_dwordx4 v[{PK}:{PK+3}], {vt[4]}, {srd(S_OUT)}, {T2} offen", "vmem_store", R("v", PK, 4) + [("v", V_T + 4)], []))
    S_GW = S_SOFF
    def tail(last_side, st_):
        for f in last_side: f()
        st_("endop")
        a.s("s_lshl_b32", sr(S_GW), sr(S_J), 2); a.s("s_add_u32", sr(S_GW), sr(S_GW), sr(S_W))
        a.wait_vm(ptok_ref[0][4]); flag_store(0)
        st_("flagA")
        a.wait_vm(ptok_ref[0][9]); flag_store(1)
        st_("stored")
        a.s("s_cmp_ge_u32", sr(S_GW), 40); a.raw("s_cbranch_scc1 L_noA", "branch")
        chunk_addr(sr(S_GW), 0)
        a.s("s_mov_b32", sr(S_CO), T2)
        poll(0, "A")
        a.s("s_mov_b32", T2, sr(S_CO))
        red_loads(); red_sum_store()
        a.label("L_noA")
        st_("redA")
        a.s("s_cmp_lt_u32", sr(S_GW), 24); a.raw("s_cbranch_scc1 L_fin", "branch")
        a.s("s_sub_u32", T0, 63, sr(S_GW))
        chunk_addr(T0, 5)
        a.s("s_mov_b32", sr(S_CO), T2)
        poll(1, "B")
        st_("synced")
        a.s("s_mov_b32", T2, sr(S_CO))
        red_loads(); red_sum_store()
        a.label("L_fin")
    S_CO = 80
    ptok_ref = [None]
    program(0)
    if stamps:
        a.raw("s_waitcnt vmcnt(0)", "wait"); stamp("end")
        a.s("s_lshl_b32", T0, "s2", 2); a.s("s_add_u32", T0, T0, sr(S_W)); a.s("s_lshl_b32", T0, T0, 9)
        a.s("s_add_u32", sr(S_F), "s18", 0x4000000); a.s("s_addc_u32", sr(S_F + 1), "s19", 0); a.s("s_and_b32", sr(S_F + 1), sr(S_F + 1), "0xffff")
        a.s("s_mov_b32", sr(S_F + 2), 1024 * 512)
        a.v("v_and_b32", vt[0], 63, "v0"); a.v("v_lshlrev_b32", vt[0], 2, vt[0]); a.nop(4)
        a.raw(f"buffer_store_dword v{V_ST}, {vt[0]}, {srd(S_F)}, {T0} offen", "vmem_store")
        a.raw(f"buffer_store_dword v{V_ST+1}, {vt[0]}, {srd(S_F)}, {T0} offen offset:256", "vmem_store")
    a.label("L_end"); a.raw("s_endpgm", "other"); a.label("L_codeend")
    a.finalize()
    hdr = [f"; @launch grid=(256,1,1) block=(256,1,1) lds=163840", '.amdgcn_target "amdgcn-amd-amdhsa--gfx950"', ".text",
           f".set CPF_LINES, ((L_codeend-{KN})/128+32)/32", f".globl {KN}", ".p2align 8", f".type {KN},@function", f"{KN}:"]
    ftr = ['.section .rodata,"a"', ".p2align 6", f".amdhsa_kernel {KN}",
           "  .amdhsa_next_free_vgpr 512", "  .amdhsa_next_free_sgpr 100", "  .amdhsa_accum_offset 256",
           "  .amdhsa_group_segment_fixed_size 0", "  .amdhsa_kernarg_size 64", "  .amdhsa_user_sgpr_count 2",
           "  .amdhsa_user_sgpr_kernarg_segment_ptr 1", "  .amdhsa_system_sgpr_workgroup_id_x 1", ".end_amdhsa_kernel"]
    txt = "\n".join(l.strip() if not l.startswith(";") else l for l in a.text().splitlines() if not l.strip().startswith("; ----")) + "\n"
    open(name, "w").write("\n".join(hdr) + "\n" + txt + "\n".join(ftr) + "\n")
    print(name, "instrs:", len(a.ins), "steps:", NS, "stamps:", stamp_n[0])
    return stamp_names

if __name__ == "__main__":
    XO = ["x.0", "wq0.0", "x.1", "wq0.1"] + [f"x.{t}" for t in range(2, 10)]
    base = dict(xall=True, early={}, init_order=XO, ninit=4, nfirst=2, front=True, fixed={"k0.0": 6, "k0.1": 8}, PF=4)
    gen("v8.s", verbose=False, opt=base)
    names = gen("v8_st.s", stamps=True, opt=base)
    open("v8_steps.txt", "w").write("\n".join(names))
    o = dict(base); o["st_sched"] = {"Op1.4": [0, 1], "Op1.5": [2, 3], "Op1.6": [4], "Op1.7": [5, 6], "Op1.8": [7], "Op1.9": [8], "end": [9]}; gen("v8b.s", opt=o)
    o = dict(base); o["st_sched"] = {"Op1.6": [0, 1, 2], "Op1.7": [3, 4, 5], "Op1.8": [6, 7], "Op1.9": [8], "end": [9]}; gen("v8c.s", opt=o)
```

```python
import sys, math, struct
from asmlib import *

KN = "standalone__gqa_block_cached__near_ridge_kernel"
UNIT = 2048
NUNIT = 80
def f32bits(x): return struct.unpack("<I", struct.pack("<f", x))[0]

V_KV = 1; V_WQ = 7; V_E = 13; V_O = 14
V_BK = 15; V_BV = 16; V_BQ = 17; V_BX = 18; V_BO = 19
V_W = 20
V_M = 28; V_MC = 29; V_L = 30; V_RINV = 31
V_T = 32
V_L16 = 48
V_XA = 49
V_ST = 52
V_DUM = 54; V_XP = 55
V_A = 56; NRING = 6
V_Q = 80
V_S = 128
A_OUT = 0; A_X = 0
A_QACC = 160; A_OF = 160
def A_O(h): return 0 if h == 0 else 160

S_K = 20; S_V = 24; S_WQ = 28; S_WO = 32; S_X = 36; S_P = 40; S_F = 44; S_OUT = 48; S_DBG = 52
S_B = 56; S_J = 57; S_W = 58; S_C = 60; S_SOFF = 61; S_T0 = 62; S_T1 = 63
S_NONCE = 64; S_PB = 66; S_SAVE = 68; S_TM = 70; S_T2 = 72; S_T3 = 73
S_RH128 = 74; S_PVB = 75; S_CP = 76; S_PVC = 81
S_ROT = 84
S_LR = 82; S_LA = 83
S_QR = 85; S_QA = 86
S_OR = 87; S_OA = 88
S_XL = 89; S_XG = 90
S_R8 = 91
S_ST = 94
def srd(n): return f"s[{n}:{n+3}]"
def sr(n): return f"s{n}"
def vr(n): return f"v{n}"

class Step:
    def __init__(self, kind, h=0, t=0):
        self.kind = kind; self.h = h; self.t = t; self.bufs = []
        self.nm = 12 if kind in ("Qp", "QK", "PV", "Op") else 0
    def __repr__(self): return f"{self.kind}{self.h}.{self.t}"
class Buf:
    def __init__(self, name, units, need, kind=None, h=0, t=0):
        self.name = name; self.units = units; self.need = need; self.kind = kind; self.h = h; self.t = t
        self.issue = None; self.addr = None; self.tok = {}; self.mode = None

DEF = dict(k0="K0 W0 K1 W1 K2 W2 K3 W3 K4 W4 K5 K6 W5 K7",
           v0="V0 W6 V1 W7 V2 W8 V3 W9 V4 V5 V6 V7",
           k1="K0 K1 K2 W0 K3 W1 K4 W2 K5 W3 K6 K7 W4",
           v1="V0 W5 V1 W6 V2 W7 V3 W8 V4 W9 V5 V6 V7",
           PF=5, rot=True, nt=True, cpf=True, wpf=False, maxlead=8, maxunits=24,
           early={"k0.0": "first", "k0.1": 3}, nfirst=2, ahead_min=2,
           fa_step="Op1.9", xall=False, front=False, ninit=3, xpf=False, wq_pf=None, wo_pf=None, tail2=True)

def build_sequence(opt):
    seq = []
    def add(k, h=0, t=0): seq.append(Step(k, h, t))
    for t in range(10): add("Qp", 0, t)
    add("X1")
    def phase(txt, kh, wk, wh):
        for x in txt.split():
            if x[0] == "K": add("QK", kh, int(x[1:]))
            elif x[0] == "V": add("PV", kh, int(x[1:]))
            else: add(wk, wh, int(x[1:]))
    phase(opt["k0"], 0, "Qp", 1)
    add("M1", 0); add("M2", 0)
    phase(opt["v0"], 0, "Qp", 1)
    phase(opt["k1"], 1, "Op", 0)
    add("M2", 1)
    phase(opt["v1"], 1, "Op", 0)
    add("X3"); add("X4")
    for t in range(10): add("Op", 1, t)
    return seq

def plan(opt, verbose=False):
    seq = build_sequence(opt); NS = len(seq)
    idx = {repr(s): i for i, s in enumerate(seq)}
    occ = [[False] * NUNIT for _ in range(NS + 2)]
    def find(units, s0, s1, top=False):
        NP = NUNIT if units == 1 else NUNIT - 2
        rng = range(NP - units, -1, -1) if (top or units == 1) else range(0, NP - units + 1)
        for base in rng:
            if all(not occ[s + 1][base + u] for s in range(s0, s1 + 1) for u in range(units)): return base
        return None
    def reserve(buf, s0, s1, top=False):
        base = find(buf.units, s0, s1, top)
        if base is None: return False
        for s in range(s0, s1 + 1):
            for u in range(buf.units): occ[s + 1][base + u] = True
        buf.addr = base * UNIT; buf.issue = s0
        return True
    X = {}
    def xbuf(name, units, s0, s1):
        b = Buf(name, units, s1); assert reserve(b, s0, s1), name; X[name] = b
    tiles = []
    for i, st in enumerate(seq):
        if st.kind == "Qp":
            b1 = Buf(f"wq{st.h}.{st.t}", 12, i, "wq", st.h, st.t); st.bufs = [b1]; tiles.append(b1)
            if st.h == 0:
                b2 = Buf(f"x.{st.t}", 4, i, "x", 0, st.t); st.bufs.append(b2); tiles.append(b2)
        elif st.kind == "QK": b = Buf(f"k{st.h}.{st.t}", 12, i, "k", st.h, st.t); st.bufs = [b]; tiles.append(b)
        elif st.kind == "PV": b = Buf(f"v{st.h}.{st.t}", 12, i, "v", st.h, st.t); st.bufs = [b]; tiles.append(b)
        elif st.kind == "Op": b = Buf(f"wo{st.h}.{st.t}", 12, i, "wo", st.h, st.t); st.bufs = [b]; tiles.append(b)
    def compute_before(i, n):
        s = i
        while n > 0 and s >= 0:
            s -= 1
            if s >= 0 and seq[s].nm > 0: n -= 1
        return s
    i = idx["X10.0"]; xbuf("xQ0", 12, i, i)
    i = idx["Qp1.9"]; xbuf("xQ1", 12, i + 1, i + 2)
    i = idx["M10.0"]; xbuf("m0", 1, i, i + 1)
    i = idx["PV0.6"]; xbuf("l0", 1, i, idx["QK1.1"])
    i = idx["QK1.0"]; xbuf("xO0a", 24, i, i + 2)
    i = idx["QK1.7"]; xbuf("m1", 1, i + 1, idx["M21.0"])
    i = idx["PV1.6"]; xbuf("l1", 1, i, idx["X40.0"])
    i = idx["X30.0"]; xbuf("xO1a", 24, i, i + 2)
    byname = {b.name: b for b in tiles}
    early = opt["early"]
    for b in tiles: b.mode = "a"
    for n, when in early.items():
        b = byname[n]; s0 = -1 if when == "first" else when
        assert reserve(b, s0, b.need, top=True), n
    last = -1; per_step = {}
    nfirst = opt["nfirst"]
    fixed = opt.get("fixed", {})
    if opt["xall"]:
        for b in tiles:
            if b.kind == "x": assert reserve(b, -1, b.need, top=True), b.name
    for b in tiles:
        if b.name in early or b.addr is not None: continue
        s = max(last, b.need - opt["maxlead"], -1)
        if b.kind in ("wq", "x") and b.h == 0 and b.t < nfirst: s = -1
        else: s = max(s, 0)
        if b.name in fixed: s = max(s, fixed[b.name])
        while s < b.need:
            ok = (s < 0 or seq[s].nm > 0)
            if ok and s >= 0 and per_step.get(s, 0) + b.units > opt["maxunits"]: ok = False
            if ok and reserve(b, s, b.need): break
            s += 1
        assert b.addr is not None, b.name
        per_step[b.issue] = per_step.get(b.issue, 0) + b.units
        last = b.issue
    issue_at = {}
    order = [byname[n] for n, w in early.items() if w == "first"] + [b for b in tiles if b.name not in early or early[b.name] != "first"]
    if opt.get("init_order"):
        io = [byname[n] for n in opt["init_order"]]
        order = io + [b for b in order if b not in io]
    for b in order: issue_at.setdefault(b.issue, []).append(b)
    for s_, lst in issue_at.items():
        if s_ >= 0: lst.sort(key=lambda b: (b.name in early and early[b.name] != "first"))
    if verbose:
        for i, st in enumerate(seq):
            print(i, st, [(b.name, b.issue, b.addr // UNIT) for b in st.bufs], "issues:", [b.name for b in issue_at.get(i, [])], "occ", sum(occ[i + 1]))
        print("prologue:", [b.name for b in issue_at.get(-1, [])])
    return seq, idx, X, issue_at

def gen(name, stamps=False, opt=None, verbose=False):
    o = dict(DEF); o.update(opt or {}); opt = o
    seq, idx, X, issue_at = plan(opt, verbose)
    NS = len(seq); PF = opt["PF"]
    ntf = "nt" if opt["nt"] else ""
    T0, T1, T2, T3 = sr(S_T0), sr(S_T1), sr(S_T2), sr(S_T3)
    a = Asm()
    stamp_n = [0]; stamp_names = []
    def stamp(nm="-", record=True):
        if not stamps: return
        k = stamp_n[0]; stamp_n[0] += 1
        if record: stamp_names.append(nm)
        a.raw(f"s_memtime s[{S_ST}:{S_ST+1}]", "smem")
        a.wait_lds_all()
        a.s("s_sub_u32", sr(S_ST), sr(S_ST), sr(S_TM))
        a.add(I(f"v_writelane_b32 v{V_ST + k // 64}, s{S_ST}, {k % 64}", "valu", [("s", S_ST)], [("v", V_ST + k // 64)]))

    a.s("s_cmp_ge_u32", "s2", 256)
    a.raw("s_cbranch_scc1 L_end", "branch")
    a.raw("s_load_dwordx16 s[4:19], s[0:1], 0", "smem")
    if stamps: a.raw(f"s_memtime s[{S_TM}:{S_TM+1}]", "smem")
    a.s("s_lshr_b32", sr(S_B), "s2", 4)
    a.s("s_and_b32", T0, "s2", 7); a.s("s_lshl_b32", T0, T0, 1); a.s("s_bfe_u32", T1, "s2", "0x10003"); a.s("s_or_b32", sr(S_J), T0, T1)
    tv = [f"v{V_S+i}" for i in range(20)]
    vl, vw, vi32, vhf, vg1, vrr, vcc_, vf, vlp, vqh, vrh, t0, t1, t2, t3, t4 = tv[:16]
    a.v("v_and_b32", vl, 63, "v0"); a.v("v_lshrrev_b32", vw, 6, "v0")
    a.v("v_readfirstlane_b32", sr(S_W), vw)
    a.v("v_lshlrev_b32", vr(V_L16), 4, vl)
    def f16_of(dst, r, tmp):
        a.v("v_and_b32", dst, 2, r); a.v("v_lshlrev_b32", dst, 5, dst)
        a.v("v_and_b32", tmp, 4, r); a.v("v_lshlrev_b32", tmp, 3, tmp); a.v("v_or_b32", dst, dst, tmp)
        a.v("v_and_b32", tmp, 8, r); a.v("v_lshlrev_b32", tmp, 1, tmp); a.v("v_or_b32", dst, dst, tmp)
    for n in range(6):
        a.v("v_add_u32", t0, n * 64, vl)
        a.v("v_mul_u32_u24", t1, 2731, t0); a.v("v_lshrrev_b32", t1, 16, t1)
        f16_of(vf, t1, t2)
        a.v("v_lshlrev_b32", t0, 4, t0); a.v("v_xor_b32", t0, t0, vf)
        a.v("v_subrev_u32", vr(V_KV + n), (n & 3) * 1024, t0)
        a.v("v_mul_u32_u24", t2, 12288 - 384, t1); a.v("v_add_u32", t2, t2, t0)
        a.v("v_subrev_u32", vr(V_WQ + n), (n & 3) * 1024, t2)
    for od, reg in ((0, V_E), (1, V_O)):
        a.v("v_lshrrev_b32", t1, 3, vl)
        if od: a.v("v_add_u32", t1, 8, t1)
        f16_of(vf, t1, t2)
        a.v("v_and_b32", t0, 7, vl); a.v("v_lshlrev_b32", t0, 4, t0); a.v("v_xor_b32", t0, t0, vf)
        a.v("v_mul_u32_u24", t1, 1280, t1); a.v("v_add_u32", vr(reg), t0, t1)
        if od: a.v("v_subrev_u32", vr(reg), 1024, vr(reg))
    a.s("s_and_b32", T0, sr(S_W), 1)
    a.s("s_mul_i32", sr(S_LR), T0, 12288); a.s("s_mul_i32", sr(S_LA), sr(S_W), 6144)
    a.s("s_mul_i32", sr(S_QR), T0, 32 * 12288); a.s("s_mul_i32", sr(S_QA), sr(S_W), 16 * 12288)
    a.s("s_mul_i32", sr(S_OR), T0, 96 * 1280); a.s("s_mul_i32", sr(S_OA), sr(S_W), 48 * 1280)
    a.s("s_lshl_b32", sr(S_XL), sr(S_W), 11); a.s("s_mul_i32", sr(S_XG), sr(S_W), 16 * 1280)
    a.s("s_lshr_b32", T0, sr(S_W), 1)
    a.s("s_lshl_b32", sr(S_RH128), T0, 7)
    a.s("s_lshl_b32", T1, T0, 8); a.s("s_sub_u32", sr(S_PVB), 128, T1)
    a.s("s_mul_i32", T1, T0, 384); a.s("s_sub_u32", sr(S_PVC), 256, T1)
    a.s("s_cmp_ge_u32", sr(S_B), 10); a.s("s_cselect_b32", T0, 10, 0); a.s("s_sub_u32", sr(S_ROT), sr(S_B), T0)
    if not opt["rot"]: a.s("s_mov_b32", sr(S_ROT), 0)
    a.raw("s_waitcnt lgkmcnt(0)", "wait")
    stamp("kernarg")
    def mk_srd(dst, ptr, off_lo=None, off_hi=None, size=0):
        if off_lo is None:
            a.s("s_mov_b32", sr(dst), sr(ptr)); a.s("s_and_b32", sr(dst + 1), sr(ptr + 1), "0xffff")
        else:
            a.s("s_add_u32", sr(dst), sr(ptr), off_lo)
            a.s("s_addc_u32", sr(dst + 1), sr(ptr + 1), off_hi if off_hi is not None else 0)
            a.s("s_and_b32", sr(dst + 1), sr(dst + 1), "0xffff")
        a.s("s_mov_b32", sr(dst + 2), size); a.s("s_mov_b32", sr(dst + 3), "0x20000")
    a.s("s_lshl_b32", T2, sr(S_B), 4); a.s("s_add_u32", T2, T2, sr(S_J))
    a.s("s_mul_i32", T0, T2, 393216); a.s("s_mul_hi_u32", T1, T2, 393216)
    mk_srd(S_K, 6, T0, T1, 393216); mk_srd(S_V, 8, T0, T1, 393216)
    a.s("s_mul_i32", T0, sr(S_J), 768); mk_srd(S_WQ, 10, T0, None, 0); a.s("s_sub_u32", sr(S_WQ + 2), 7864320, T0)
    a.s("s_mul_i32", T0, sr(S_B), 81920); mk_srd(S_X, 4, T0, None, 81920)

    def late_setup():
        a.v("v_and_b32", vi32, 31, vl); a.v("v_lshrrev_b32", vhf, 5, vl)
        a.v("v_bfe_u32", vg1, vl, 4, 1); a.v("v_bfe_u32", vrr, vl, 2, 2); a.v("v_and_b32", vcc_, 3, vl)
        a.v("v_and_b32", vqh, 1, vw); a.v("v_lshrrev_b32", vrh, 1, vw)
        a.v("v_lshlrev_b32", vlp, 5, vg1); a.v("v_lshlrev_b32", t0, 3, vcc_); a.v("v_add_u32", vlp, vlp, t0)
        f16_of(vf, vi32, t2)
        a.v("v_lshlrev_b32", t0, 4, vhf); a.v("v_xor_b32", t0, t0, vf)
        a.v("v_lshlrev_b32", t1, 5, vrh); a.v("v_add_u32", t1, t1, vi32); a.v("v_mul_u32_u24", t1, 384, t1); a.v("v_add_u32", vr(V_BK), t0, t1)
        a.v("v_lshlrev_b32", t1, 5, vqh); a.v("v_add_u32", t1, t1, vi32); a.v("v_lshlrev_b32", t1, 7, t1); a.v("v_add_u32", vr(V_BX), t0, t1)
        a.v("v_and_b32", vf, 2, vrr); a.v("v_lshlrev_b32", vf, 5, vf); a.v("v_lshlrev_b32", t2, 5, vhf); a.v("v_or_b32", vf, vf, t2)
        a.v("v_lshlrev_b32", t0, 6, vrh); a.v("v_add_u32", t0, t0, vlp); a.v("v_xor_b32", t0, t0, vf)
        a.v("v_lshlrev_b32", t1, 2, vhf); a.v("v_add_u32", t1, t1, vrr)
        a.v("v_lshlrev_b32", t2, 7, t1); a.v("v_add_u32", vr(V_BO), t0, t2)
        a.v("v_lshlrev_b32", t2, 5, vrh); a.v("v_add_u32", t1, t1, t2); a.v("v_mul_u32_u24", t1, 384, t1)
        a.v("v_add_u32", t1, t1, t0); a.v("v_lshlrev_b32", t2, 7, vrh); a.v("v_add_u32", vr(V_BV), t1, t2)
        a.v("v_and_b32", vf, 2, vrr); a.v("v_lshlrev_b32", vf, 5, vf); a.v("v_lshlrev_b32", t2, 4, vhf); a.v("v_or_b32", vf, vf, t2)
        a.v("v_lshlrev_b32", t0, 6, vrh); a.v("v_add_u32", t0, t0, vlp); a.v("v_xor_b32", t0, t0, vf)
        a.v("v_lshlrev_b32", t1, 3, vhf); a.v("v_add_u32", t1, t1, vrr); a.v("v_mul_u32_u24", t1, 384, t1)
        a.v("v_add_u32", t1, t1, t0); a.v("v_lshlrev_b32", t2, 7, vrh); a.v("v_add_u32", vr(V_BQ), t1, t2)
        a.v("v_mul_u32_u24", t0, 12288, vqh); a.v("v_add_u32", vr(V_XA + 1), t0, vr(V_L16))
        a.v("v_mul_u32_u24", t1, 6144, vrh); a.v("v_add_u32", vr(V_XA), vr(V_XA + 1), t1)
        a.v("v_mul_u32_u24", t0, 12288, vw); a.v("v_add_u32", vr(V_XA + 2), t0, vr(V_L16))
        a.v("v_xor_b32", t0, 2, vw); a.v("v_mul_u32_u24", t0, 12288, t0); a.v("v_add_u32", vr(V_XP), t0, vr(V_L16))
        a.s("s_mul_i32", T0, sr(S_J), 491520); mk_srd(S_WO, 12, T0, None, 491520)
        a.s("s_mul_i32", T0, sr(S_B), 81920); mk_srd(S_OUT, 14, T0, None, 81920)
        a.s("s_mul_i32", T0, sr(S_B), 16 * 81920); mk_srd(S_P, 18, T0, None, 16 * 81920)
        a.s("s_lshl_b32", T0, sr(S_B), 8); a.s("s_add_u32", T0, T0, 0x2000000); mk_srd(S_F, 18, T0, None, 256)
        mk_srd(S_DBG, 16, None, None, 256)
        a.s("s_mov_b32", sr(S_C), hex(f32bits(math.log2(math.e) / math.sqrt(192.0))))
        a.s("s_mul_i32", sr(S_PB), sr(S_J), 81920); a.s("s_lshl_b32", T0, sr(S_W), 11); a.s("s_add_u32", sr(S_PB), sr(S_PB), T0)
    if stamps:
        a.v("v_mov_b32", vr(V_ST + 1), 0)

    def rot_tile(t, dst):
        a.s("s_add_u32", dst, sr(S_ROT), t); a.s("s_cmp_ge_u32", dst, 10); a.s("s_cselect_b32", T3, 10, 0); a.s("s_sub_u32", dst, dst, T3)

    base_stamp = stamp_n[0]
    def program(role):
        a.vm_issued = 0; a.vm_done = 0; a.lds_issued = 0; a.lds_done = 0
        stamp_n[0] = base_stamp
        rec = (role == 0)
        def st_(nm): stamp(nm, rec)
        toks = {}
        def mine(b): return b.mode == role or b.mode == "a"
        def dma_items(b):
            if not mine(b): return []
            items = []; base = b.addr; allm = (b.mode == "a")
            np_ = 6 if allm else 12
            if b.kind in ("k", "v", "wq"):
                srdn = {"k": S_K, "v": S_V, "wq": S_WQ}[b.kind]; vo = V_WQ if b.kind == "wq" else V_KV
                fl = ntf if b.kind != "wq" else opt.get("wfl", "")
                gstride = 16 * 12288 if b.kind == "wq" else 6144
                lds0 = S_LA if allm else S_LR
                def mk(m):
                    g, mm = divmod(m, 6)
                    def f():
                        if m == 0:
                            if b.kind == "wq":
                                rot_tile(b.t, sr(S_SOFF)); a.s("s_mul_i32", sr(S_SOFF), sr(S_SOFF), 64 * 12288)
                                a.s("s_add_u32", sr(S_SOFF), sr(S_SOFF), sr(S_QA if allm else S_QR))
                                if b.h: a.s("s_add_u32", sr(S_SOFF), sr(S_SOFF), 384)
                            else: a.s("s_add_u32", sr(S_SOFF), sr(lds0), b.h * 196608 + b.t * 24576)
                        if m == 6: a.s("s_add_u32", sr(S_SOFF), sr(S_SOFF), gstride)
                        if mm in (0, 4): a.s("s_add_u32", "m0", sr(lds0), base + g * 6144 + (4096 if mm == 4 else 0))
                        a.dma(vr(vo + mm), srd(srdn), sr(S_SOFF), (mm & 3) * 1024, fl)
                        if m == np_ - 1: toks[b.name] = a.vm_issued
                    return f
                for m in range(np_): items.append(mk(m))
            elif b.kind == "wo":
                def mk(m):
                    def f():
                        if m == 0:
                            rot_tile(b.t, sr(S_SOFF)); a.s("s_lshl_b32", sr(S_SOFF), sr(S_SOFF), 7)
                            a.s("s_add_u32", sr(S_SOFF), sr(S_SOFF), sr(S_OA if allm else S_OR))
                            if b.h: a.s("s_add_u32", sr(S_SOFF), sr(S_SOFF), 245760)
                        if m % 4 == 0: a.s("s_add_u32", "m0", sr(S_LA if allm else S_LR), base + m * 1024)
                        d = (m >> 1) * 20480 - (m & 3) * 1024 + (1024 if m & 1 else 0)
                        if d: a.s("s_add_u32", T2, sr(S_SOFF), d); so = T2
                        else: so = sr(S_SOFF)
                        a.dma(vr(V_O if m & 1 else V_E), srd(S_WO), so, (m & 3) * 1024, opt.get("wfl", ""))
                        if m == np_ - 1: toks[b.name] = a.vm_issued
                    return f
                for m in range(np_): items.append(mk(m))
            elif b.kind == "x":
                def mk(m):
                    def f():
                        if m == 0:
                            rot_tile(b.t, sr(S_R8)); a.s("s_lshl_b32", sr(S_R8), sr(S_R8), 7); a.s("s_add_u32", sr(S_R8), sr(S_R8), sr(S_XG))
                            a.s("s_add_u32", "m0", sr(S_XL), base)
                        a.dma(vr(V_O if m & 1 else V_E), srd(S_X), sr(S_R8), m * 1024, opt.get("xfl", ""))
                        if m == 1: toks[b.name] = a.vm_issued
                    return f
                for m in range(2): items.append(mk(m))
            return items

        pro = issue_at.get(-1, [])
        n1 = opt["ninit"]
        if opt["xpf"]:
            a.v("v_lshlrev_b32", vr(V_T), 3, vr(V_L16))
            a.s("s_mul_i32", T2, sr(S_W), 20480)
            for k in range(3):
                a.bload("buffer_load_dword", vr(V_DUM), vr(V_T), srd(S_X), T2, 0, "")
                if k < 2: a.s("s_add_u32", T2, T2, 8192)
        for b in pro[:n1]:
            for f in dma_items(b): f()
        st_("dma_issued")
        late_setup()
        for b in pro[n1:]:
            for f in dma_items(b): f()
        def wpf_items():
            p0, p1, p2 = vr(V_T + 13), vr(V_T + 14), vr(V_T + 15)
            def f1():
                a.v("v_min_u32", p0, 239, "v0")
                a.v("v_mul_u32_u24", p1, 10923, p0); a.v("v_lshrrev_b32", p1, 16, p1)
                a.v("v_mul_u32_u24", p2, 6, p1); a.v("v_sub_u32", p2, p0, p2); a.v("v_lshlrev_b32", p2, 7, p2)
                a.v("v_mul_u32_u24", p1, 12288, p1); a.v("v_add_u32", p1, p1, p2)
                a.s("s_mul_i32", T2, sr(S_B), 40 * 12288)
                a.bload("buffer_load_dword", vr(V_DUM), p1, srd(S_WQ), T2, 0, "")
            def f2():
                a.v("v_min_u32", p0, 239, "v0"); a.v("v_lshlrev_b32", p2, 7, p0)
                a.s("s_mul_i32", T3, sr(S_B), 30720)
                a.bload("buffer_load_dword", vr(V_DUM), p2, srd(S_WO), T3, 0, "")
            return f1, f2
        if opt["cpf"]:
            a.s("s_cmp_lg_u32", sr(S_W), 3); a.raw("s_cbranch_scc1 L_nocpf", "branch")
            a.raw(f"s_getpc_b64 s[{S_CP}:{S_CP+1}]", "salu")
            a.label("L_pc")
            a.raw(f"s_sub_u32 s{S_CP}, s{S_CP}, L_pc-{KN}", "salu"); a.raw(f"s_subb_u32 s{S_CP+1}, s{S_CP+1}, 0", "salu")
            a.raw(f"s_and_b32 s{S_CP+1}, s{S_CP+1}, 0xffff", "salu"); a.raw(f"s_mov_b32 s{S_CP+2}, L_codeend-{KN}", "salu")
            a.raw(f"s_mov_b32 s{S_CP+3}, 0x20000", "salu"); a.raw("s_bfe_u32 s80, s2, 0x50003", "salu")
            a.raw("s_mul_i32 s80, s80, CPF_LINES*128", "salu")
            a.v("v_lshlrev_b32", vr(V_T), 3, vr(V_L16))
            a.nop(2)
            a.raw(f"buffer_load_dword v{V_DUM}, v{V_T}, s[{S_CP}:{S_CP+3}], s80 offen", "vmem_load")
            a.label("L_nocpf")
        if role == 0:
            a.s("s_or_b32", T0, "s2", sr(S_W)); a.s("s_cmp_lg_u32", T0, 0)
            a.raw("s_cbranch_scc1 L_nononce", "branch")
            a.raw(f"s_memrealtime s[{S_NONCE}:{S_NONCE+1}]", "smem"); a.raw("s_waitcnt lgkmcnt(0)", "wait")
            a.s("s_or_b32", sr(S_NONCE), sr(S_NONCE), 1)
            a.v("v_mov_b32", vr(V_T + 2), sr(S_NONCE)); a.v("v_mov_b32", vr(V_T + 3), sr(S_NONCE + 1)); a.v("v_mov_b32", vr(V_T + 4), 0)
            a.raw(f"buffer_store_dwordx2 v[{V_T+2}:{V_T+3}], v{V_T+4}, {srd(S_DBG)}, 0 offen sc1", "vmem_store")
            a.label("L_nononce")

        def addr_items(i):
            st = seq[i]; W = V_W; its = []; sb = st.bufs[0].addr
            if st.kind == "QK":
                its.append(lambda: a.v("v_add_u32", vr(W), sb, vr(V_BK)))
                for k in (1, 2, 3): its.append(lambda k=k: a.v("v_xor_b32", vr(W + k), 32 * k, vr(W)))
            elif st.kind == "PV":
                its.append(lambda: a.v("v_add_u32", vr(W), sb, vr(V_BV)))
                its.append(lambda: a.v("v_xad_u32", vr(W + 1), vr(W), 64, sr(S_RH128)))
                its.append(lambda: a.v("v_xad_u32", vr(W + 2), vr(W), 64, sr(S_PVB)))
                its.append(lambda: a.v("v_add_u32", vr(W + 3), sr(S_PVC), vr(W)))
                for k in range(4): its.append(lambda k=k: a.v("v_xor_b32", vr(W + 4 + k), 16, vr(W + k)))
            elif st.kind == "Qp":
                its.append(lambda: a.v("v_add_u32", vr(W), sb, vr(V_BQ)))
                its.append(lambda: a.v("v_xad_u32", vr(W + 1), vr(W), 64, sr(S_RH128)))
                for k in range(2): its.append(lambda k=k: a.v("v_xor_b32", vr(W + 2 + k), 32, vr(W + k)))
                if st.h == 0:
                    sx = st.bufs[1].addr
                    its.append(lambda: a.v("v_add_u32", vr(W + 4), sx, vr(V_BX)))
                    for k in (1, 2, 3): its.append(lambda k=k: a.v("v_xor_b32", vr(W + 4 + k), 32 * k, vr(W + 4)))
            elif st.kind == "Op":
                its.append(lambda: a.v("v_add_u32", vr(W), sb, vr(V_BO)))
                its.append(lambda: a.v("v_xor_b32", vr(W + 1), 16, vr(W)))
            return its
        def frag_spec(i, n):
            st = seq[i]; W = V_W; xb = []
            if st.kind == "QK":
                reads = [("ds_read_b128", 0, 4, vr(W + (n & 3)), 128 * (n >> 2))]
                D = rs("v", V_S + 16 * st.t, 16); B = rs("v", V_Q + 4 * n, 4); C = "0" if n == 0 else D
            elif st.kind == "PV":
                u, tau = n // 6, n % 6
                reg, add = {0: (0, 0), 1: (1, 0), 2: (0, 128), 3: (2, 0), 4: (3, 0), 5: (2, 128)}[tau]
                reads = [("ds_read_b64_tr_b16", 2 * hf, 2, vr(W + reg + 4 * hf), (16 * u + 8 * hf) * 384 + add) for hf in (0, 1)]
                D = rs("a", A_O(st.h) + 16 * tau, 16); B = rs("v", V_S + 16 * st.t + 4 * u, 4)
                C = "0" if (st.t == 0 and u == 0) else D
            elif st.kind == "Qp":
                ks, T = n // 3, n % 3
                reg, add = {0: (0, 0), 1: (1, 0), 2: (0, 128)}[T]
                reads = [("ds_read_b64_tr_b16", 2 * hf, 2, vr(W + reg + 2 * hf), (16 * ks + 4 * hf) * 384 + add) for hf in (0, 1)]
                D = rs("a", A_QACC + 16 * T, 16)
                xr = A_X + 4 * (st.t * 4 + ks); B = rs("a", xr, 4)
                if T == 0 and st.h == 0: xb = [("ds_read_b128", rs("a", xr, 4), vr(W + 4 + ks), 0)]
                C = "0" if (st.t == 0 and ks == 0) else D
            else:
                reads = [("ds_read_b64_tr_b16", 2 * hf, 2, vr(W + hf), (16 * n + 8 * hf) * 128) for hf in (0, 1)]
                D = rs("a", A_OUT + 16 * st.t, 16)
                B = rs("a", A_OF + 4 * n, 4) if (st.h == 0 and i < idx["M21.0"]) else rs("v", V_Q + 4 * n, 4)
                C = "0" if (st.h == 0 and n == 0) else D
            return reads, xb, D, B, C
        gstart = {}; g = 0
        for i, st in enumerate(seq): gstart[i] = g; g += st.nm
        frag_tok = {}
        def issue_frag(i, n):
            reads, xb, D, B, C = frag_spec(i, n)
            gi = gstart[i] + n; rb = V_A + 4 * (gi % NRING); tok = None
            for (op, dst, addr, off) in xb: a.ds_read(op, dst, addr, off)
            for (op, ro, cnt, addr, off) in reads: tok = a.ds_read(op, rs("v", rb + ro, cnt), addr, off)
            frag_tok[gi] = tok

        def max_items(t, first):
            regs = [V_S + 16 * t + k for k in range(16)]; its = []
            if first:
                its.append(lambda: a.v("v_max3_f32", vr(V_M), vr(regs[0]), vr(regs[1]), vr(regs[2])))
                rest = regs[3:]
                for k in range(0, 12, 2): its.append(lambda k=k: a.v("v_max3_f32", vr(V_M), vr(V_M), vr(rest[k]), vr(rest[k + 1])))
                its.append(lambda: a.v("v_max_f32", vr(V_M), vr(V_M), vr(rest[12])))
            else:
                for k in range(0, 16, 2): its.append(lambda k=k: a.v("v_max3_f32", vr(V_M), vr(V_M), vr(regs[k]), vr(regs[k + 1])))
            return its
        def xhalf(reg, op):
            x0, x1 = vr(V_T), vr(V_T + 1)
            a.v("v_mov_b32", x0, vr(reg)); a.v("v_mov_b32", x1, vr(reg))
            a.v("v_permlane32_swap_b32", x0, x1); a.v(op, vr(reg), x0, x1)
        def scr_addr(dst, partner, buf):
            a.v("v_lshrrev_b32", dst, 2, vr(V_L16))
            a.s("s_lshl_b32", T2, sr(S_W), 8)
            if partner: a.s("s_xor_b32", T2, T2, 512)
            a.s("s_add_u32", T2, T2, buf.addr)
            a.v("v_add_u32", dst, T2, dst)
        def m_send(h):
            def f():
                xhalf(V_M, "v_max_f32"); scr_addr(vr(V_T + 2), False, X[f"m{h}"])
                a.ds_write("ds_write_b32", vr(V_T + 2), vr(V_M)); a.wait_lds_all()
            return f
        def m_recv(h):
            def f():
                scr_addr(vr(V_T + 2), True, X[f"m{h}"])
                tok = a.ds_read("ds_read_b32", vr(V_T + 3), vr(V_T + 2)); a.wait_lds(tok)
                a.v("v_max_f32", vr(V_M), vr(V_M), vr(V_T + 3)); a.v("v_mul_f32", vr(V_MC), sr(S_C), vr(V_M)); a.v("v_mov_b32", vr(V_L), 0)
            return f
        def p_items(t):
            base = V_S + 16 * t; fs = []; gs = []
            for k in range(0, 16, 2):
                r0 = base + k
                def f(r0=r0):
                    a.v("v_fma_f32", vr(r0), vr(r0), sr(S_C), f"-v{V_MC}"); a.v("v_fma_f32", vr(r0 + 1), vr(r0 + 1), sr(S_C), f"-v{V_MC}")
                    a.v("v_exp_f32", vr(r0), vr(r0)); a.v("v_exp_f32", vr(r0 + 1), vr(r0 + 1))
                def g_(r0=r0, k=k):
                    a.v("v_add_f32", vr(V_L), vr(V_L), vr(r0)); a.v("v_add_f32", vr(V_L), vr(V_L), vr(r0 + 1))
                    a.v("v_cvt_pk_bf16_f32", vr(base + k // 2), vr(r0), vr(r0 + 1))
                fs.append(f); gs.append(g_)
            out = []
            for k in range(8):
                out.append(fs[k])
                if k >= 1: out.append(gs[k - 1])
            out.append(gs[7]); return out
        def l_send(h):
            def f():
                xhalf(V_L, "v_add_f32"); scr_addr(vr(V_T + 2), False, X[f"l{h}"])
                a.ds_write("ds_write_b32", vr(V_T + 2), vr(V_L)); a.wait_lds_all()
            return f
        def q_write_items(buf):
            its = []
            for T in range(3):
                for u in range(2):
                    def f(T=T, u=u):
                        t = [vr(V_T + k) for k in range(8)]; q = [vr(V_T + 8 + k) for k in range(4)]
                        for k in range(8): a.v("v_accvgpr_read_b32", t[k], f"a{A_QACC + 16*T + 8*u + k}")
                        for k in range(4): a.v("v_cvt_pk_bf16_f32", q[k], t[2 * k], t[2 * k + 1])
                        a.v("v_permlane32_swap_b32", q[0], q[2]); a.v("v_permlane32_swap_b32", q[1], q[3])
                        a.v("v_add_u32", t[0], buf.addr, vr(V_XA))
                        a.ds_write("ds_write_b128", t[0], rs("v", V_T + 8, 4), (2 * T + u) * 1024)
                    its.append(f)
            its.append(lambda: a.wait_lds_all()); return its
        def frags_read_items(buf, dkind, dbase):
            its = [lambda: a.v("v_add_u32", vr(V_T + 12), buf.addr, vr(V_XA + 1))]
            for s_ in range(12): its.append(lambda s_=s_: a.ds_read("ds_read_b128", rs(dkind, dbase + 4 * s_, 4), vr(V_T + 12), s_ * 1024))
            its.append(lambda: a.wait_lds_all()); return its
        def o_send_items(buf, h):
            its = [lambda: a.v("v_add_u32", vr(V_T + 12), buf.addr, vr(V_XA + 2))]
            for k in range(12): its.append(lambda k=k: a.ds_write("ds_write_b128", vr(V_T + 12), rs("a", A_O(h) + 48 + 4 * k, 4), k * 1024))
            its.append(lambda: a.wait_lds_all()); return its
        def o_comb_items(bufa, lbuf, RB, h):
            its = []
            def f0():
                a.v("v_add_u32", vr(V_T + 12), bufa.addr, vr(V_XP))
                scr_addr(vr(V_T + 13), True, lbuf)
                a.ds_read("ds_read_b32", vr(V_T + 14), vr(V_T + 13))
                for k in range(12): a.ds_read("ds_read_b128", rs("v", RB + 4 * k, 4), vr(V_T + 12), k * 1024)
                a.wait_lds_all()
                a.v("v_add_f32", vr(V_RINV), vr(V_L), vr(V_T + 14)); a.v("v_rcp_f32", vr(V_RINV), vr(V_RINV))
            its.append(f0)
            for fr in range(6):
                def f(fr=fr):
                    t = [vr(V_T + k) for k in range(8)]; q = [vr(V_T + 8 + k) for k in range(4)]
                    for k in range(8): a.v("v_accvgpr_read_b32", t[k], f"a{A_O(h) + 8*fr + k}")
                    for k in range(8): a.v("v_add_f32", t[k], t[k], vr(RB + 8 * fr + k))
                    for k in range(8): a.v("v_mul_f32", t[k], t[k], vr(V_RINV))
                    for k in range(4): a.v("v_cvt_pk_bf16_f32", q[k], t[2 * k], t[2 * k + 1])
                    a.ds_write("ds_write_b128", vr(V_T + 12), rs("v", V_T + 8, 4), fr * 1024)
                its.append(f)
            its.append(lambda: a.wait_lds_all()); return its
        def ofrags_read_items(buf, dkind, dbase):
            its = [lambda: a.v("v_add_u32", vr(V_T + 12), buf.addr, vr(V_XA + 1))]
            for s_ in range(12):
                off = (24576 + s_ * 1024) if s_ < 6 else (s_ - 6) * 1024
                its.append(lambda s_=s_, off=off: a.ds_read("ds_read_b128", rs(dkind, dbase + 4 * s_, 4), vr(V_T + 12), off))
            its.append(lambda: a.wait_lds_all()); return its
        ptok = {}
        def pstore_items(t):
            tb = V_S + 24 * (t & 1)
            def f1():
                for k in range(16): a.v("v_accvgpr_read_b32", vr(tb + k), f"a{A_OUT + 16*t + k}")
            def f2():
                for k in range(8): a.v("v_cvt_pk_bf16_f32", vr(tb + 16 + k), vr(tb + 2 * k), vr(tb + 2 * k + 1))
            def f3():
                rot_tile(t, T2); a.s("s_lshl_b32", T2, T2, 13); a.s("s_add_u32", T2, T2, sr(S_PB))
                a.bstore("buffer_store_dwordx4", rs("v", tb + 16, 4), vr(V_L16), srd(S_P), T2, 0, "sc1")
                ptok[t] = a.bstore("buffer_store_dwordx4", rs("v", tb + 20, 4), vr(V_L16), srd(S_P), T2, 1024, "sc1")
            return [f1, f2, f3]
        side = {i: [] for i in range(NS + 1)}
        def ix(n): return idx[n]
        for i, st in enumerate(seq):
            if st.kind == "QK":
                if not (st.h == 0 and st.t == 7): side[i + 1] += max_items(st.t, st.t == 0)
                if st.t == 7 and st.h == 1: side[i + 1] += [m_send(1)]
            if st.kind == "PV" and st.t < 7:
                side[i] += p_items(st.t + 1)
                if st.t == 6: side[i] += [l_send(st.h)]
            if st.kind == "Op" and st.h == 1: side[i + 1] += pstore_items(st.t)
        side[ix("Qp1.9") + 1] = q_write_items(X["xQ1"]) + side[ix("Qp1.9") + 1]
        side[ix("Qp1.9") + 2] = frags_read_items(X["xQ1"], "v", V_Q) + side[ix("Qp1.9") + 2]
        side[ix("Op1.0")] = [nonce_load] + side[ix("Op1.0")]
        def flagA_pub():
            nonce_check(); flag_store(0)
        side[ix(opt["fa_step"])] = [flagA_pub] + side[ix(opt["fa_step"])]
        side[NS] = side[NS] + [flagA_load]
        if opt["wq_pf"] is not None: side[opt["wq_pf"]] = [wpf_items()[0]] + side[opt["wq_pf"]]
        if opt["wo_pf"] is not None: side[opt["wo_pf"]] = [wpf_items()[1]] + side[opt["wo_pf"]]
        side[ix("QK1.0")] = o_send_items(X["xO0a"], 0) + side[ix("QK1.0")]
        side[ix("QK1.1")] += o_comb_items(X["xO0a"], X["l0"], V_S + 64, 0)
        side[ix("QK1.2")] += ofrags_read_items(X["xO0a"], "a", A_OF)

        landed = set(); prefetched = {}
        def wait_tiles(i):
            tk = [toks[b.name] for b in seq[i].bufs if mine(b)]
            if tk: a.wait_vm(max(tk))
        def can_ahead(i, j): return all(b.issue <= i - opt.get("ahead_min", 2) for b in seq[j].bufs)
        for i, st in enumerate(seq):
            a.comment(f"---- step {i}: {st}")
            st_(repr(st))
            if st.nm == 0:
                if st.kind == "X1":
                    a.barrier()
                    for f in q_write_items(X["xQ0"]): f()
                    a.barrier()
                    for f in frags_read_items(X["xQ0"], "v", V_Q): f()
                elif st.kind == "M1":
                    a.barrier()
                    for f in max_items(7, False): f()
                    m_send(0)()
                elif st.kind == "M2":
                    a.barrier(); m_recv(st.h)()
                    if st.h == 1:
                        for k in range(48): a.v("v_accvgpr_read_b32", vr(V_Q + k), f"a{A_OF + k}")
                    for f in p_items(0): f()
                elif st.kind == "X3":
                    a.barrier()
                    for f in o_send_items(X["xO1a"], 1): f()
                elif st.kind == "X4":
                    a.barrier()
                    for f in o_comb_items(X["xO1a"], X["l1"], V_S + 64, 1): f()
                continue
            if i not in landed: wait_tiles(i); landed.add(i)
            j = i + 1 if (i + 1 < NS and seq[i + 1].nm > 0) else None
            ahead = j is not None and can_ahead(i, j)
            if ahead: wait_tiles(j)
            if repr(st) == opt["fa_step"]: a.wait_vm(ptok[4])
            a.barrier()
            if ahead: landed.add(j)
            if repr(st) == "Op1.0":
                for f in ofrags_read_items(X["xO1a"], "v", V_Q): f()
            n0 = prefetched.get(i, 0)
            if n0 == 0:
                for f in addr_items(i): f()
                for n in range(min(PF, st.nm)): issue_frag(i, n)
                n0 = min(PF, st.nm)
            dm = []
            for b in issue_at.get(i, []): dm += dma_items(b)
            sd = list(side[i]); queue = []
            ratio = max(1, round(len(sd) / max(1, len(dm)))) if dm else 1
            if st.kind == "Op" and st.h == 1:
                queue = dm + sd; dm = []; sd = []
            ndm_front = 0
            if opt["front"] and dm:
                ndm_front = len(dm); queue = dm + sd; dm = []; sd = []
            while dm or sd:
                if dm: queue.append(dm.pop(0))
                for _ in range(ratio):
                    if sd: queue.append(sd.pop(0))
            nq = len(queue); done = 0; issued = n0
            for n in range(st.nm):
                if issued < st.nm: issue_frag(i, issued); issued += 1
                elif ahead:
                    k = issued - st.nm
                    if k == 0 and prefetched.get(j, 0) == 0:
                        for f in addr_items(j): f()
                    if k < min(PF, seq[j].nm): issue_frag(j, k); prefetched[j] = k + 1; issued += 1
                gi = gstart[i] + n
                a.wait_lds(frag_tok[gi])
                reads, xb, D, B, C = frag_spec(i, n)
                a.mfma(D, rs("v", V_A + 4 * (gi % NRING), 4), B, C, shape="32x32x16")
                target = math.ceil(nq * (n + 1) / st.nm)
                if ndm_front: target = max(target, min(ndm_front, math.ceil(ndm_front * (n + 1) / 7)))
                while done < min(target, nq): queue[done](); done += 1
            assert done == nq
        tail(side[NS], st_)

    VN = 254
    VFA = 250
    VFO = 249
    LB = 176; ACC = 240
    vt = [vr(V_T + k) for k in range(8)]
    def nonce_load():
        a.v("v_mov_b32", vr(VFO), 0)
        a.bload("buffer_load_dwordx2", rs("v", VN, 2), vr(VFO), srd(S_DBG), 0, 0, "sc1")
    def flagA_load():
        a.v("v_lshrrev_b32", vr(VFO), 1, vr(V_L16)); a.v("v_and_b32", vr(VFO), 127, vr(VFO))
        tokA[0] = a.bload("buffer_load_dwordx2", rs("v", VFA, 2), vr(VFO), srd(S_F), 0, 0, "sc1")
    tokA = [None]
    def flag_store(off):
        lab = f"L_fs{off}"
        a.s("s_cmp_lg_u32", sr(S_W), 0); a.raw(f"s_cbranch_scc1 {lab}", "branch")
        a.s("s_lshl_b32", T0, sr(S_J), 3); a.v("v_mov_b32", vt[0], T0)
        a.raw(f"buffer_store_dwordx2 v[{VN}:{VN+1}], {vt[0]}, {srd(S_F)}, 0 offen offset:{off} sc1", "vmem_store")
        a.label(lab)
    def nonce_check():
        a.v("v_readfirstlane_b32", T0, vr(VN)); a.nop(2)
        a.s("s_cmp_lg_u32", T0, 0); a.raw("s_cbranch_scc1 L_nok", "branch")
        a.s("s_mov_b32", T1, 0); a.v("v_mov_b32", vt[0], 0)
        a.label("L_nonce")
        a.s("s_add_u32", T1, T1, 1); a.s("s_cmp_gt_u32", T1, 100000); a.raw("s_cbranch_scc1 L_nok", "branch")
        a.raw(f"buffer_load_dwordx2 v[{VN}:{VN+1}], {vt[0]}, {srd(S_DBG)}, 0 offen sc1", "vmem_load")
        a.raw("s_waitcnt vmcnt(0)", "wait")
        a.v("v_readfirstlane_b32", T0, vr(VN)); a.nop(2)
        a.s("s_cmp_eq_u32", T0, 0); a.raw("s_cbranch_scc1 L_nonce", "branch")
        a.label("L_nok")
    def flags_ok(regs, fail_label):
        a.add(I(f"v_cmp_eq_u32 vcc, v{regs}, v{VN}", "valu", [("v", regs), ("v", VN)], [("vcc", 0)]))
        a.add(I(f"v_cmp_eq_u32 s[{S_SAVE}:{S_SAVE+1}], v{regs+1}, v{VN+1}", "valu", [("v", regs + 1)], [("s", S_SAVE), ("s", S_SAVE + 1)]))
        a.nop(2)
        a.s("s_and_b64", f"s[{S_SAVE}:{S_SAVE+1}]", f"s[{S_SAVE}:{S_SAVE+1}]", "vcc")
        a.raw(f"s_cmp_eq_u64 s[{S_SAVE}:{S_SAVE+1}], -1", "salu")
        a.raw(f"s_cbranch_scc0 {fail_label}", "branch")
    def poll(off, tag):
        a.s("s_mov_b32", T1, 0)
        a.label(f"L_poll{tag}")
        a.s("s_add_u32", T1, T1, 1); a.s("s_cmp_gt_u32", T1, 200000); a.raw(f"s_cbranch_scc1 L_pok{tag}", "branch")
        a.raw(f"buffer_load_dwordx2 v[{VFA}:{VFA+1}], v{VFO}, {srd(S_F)}, 0 offen offset:{off} sc1", "vmem_load")
        a.raw("s_waitcnt vmcnt(0)", "wait")
        flags_ok(VFA, f"L_poll{tag}")
        a.label(f"L_pok{tag}")
    S_CH = S_R8
    def chunk_addr(cidx_s, pos0):
        a.s("s_lshr_b32", T2, cidx_s, 3); a.s("s_add_u32", T2, T2, sr(S_ROT))
        if pos0: a.s("s_add_u32", T2, T2, pos0)
        a.s("s_cmp_ge_u32", T2, 10); a.s("s_cselect_b32", T3, 10, 0); a.s("s_sub_u32", T2, T2, T3)
        a.s("s_lshl_b32", T2, T2, 3); a.s("s_and_b32", T3, cidx_s, 7); a.s("s_add_u32", sr(S_CH), T2, T3)
        a.s("s_lshl_b32", T2, sr(S_CH), 10)
    def red_loads():
        for p in range(16):
            a.s("s_add_u32", T3, T2, p * 81920)
            a.raw(f"buffer_load_dwordx4 v[{LB+4*p}:{LB+4*p+3}], v{V_L16}, {srd(S_P)}, {T3} offen sc1", "vmem_load")
    def red_sum_store():
        a.s("s_mov_b32", sr(S_SAVE), "0x3f80"); a.s("s_mov_b32", sr(S_SAVE + 1), "0x3f800000")
        for p in range(16):
            a.raw(f"s_waitcnt vmcnt({15-p})", "wait")
            for k in range(4):
                lo, hi = vr(ACC + 2 * k), vr(ACC + 2 * k + 1); r = vr(LB + 4 * p + k)
                if p == 0: a.v("v_lshlrev_b32", lo, 16, r); a.v("v_and_b32", hi, "0xffff0000", r)
                else: a.v("v_dot2c_f32_bf16", lo, sr(S_SAVE), r); a.v("v_dot2c_f32_bf16", hi, sr(S_SAVE + 1), r)
        cS = sr(S_CH)
        a.s("s_lshr_b32", T2, cS, 3); a.s("s_lshl_b32", T2, T2, 7)
        a.s("s_bfe_u32", T3, cS, "0x10002"); a.s("s_lshl_b32", T3, T3, 6); a.s("s_add_u32", T2, T2, T3)
        a.s("s_and_b32", T3, cS, 1); a.s("s_lshl_b32", T3, T3, 5); a.s("s_add_u32", T2, T2, T3)
        a.s("s_bfe_u32", T3, cS, "0x10001"); a.s("s_mul_i32", T3, T3, 32 * 1280); a.s("s_add_u32", T2, T2, T3)
        PK = V_T + 8
        for k in range(4): a.v("v_cvt_pk_bf16_f32", vr(PK + k), vr(ACC + 2 * k), vr(ACC + 2 * k + 1))
        a.v("v_permlane32_swap_b32", vr(PK), vr(PK + 2)); a.v("v_permlane32_swap_b32", vr(PK + 1), vr(PK + 3))
        a.v("v_and_b32", vt[4], 31, "v0"); a.v("v_mul_u32_u24", vt[4], 1280, vt[4])
        a.v("v_bfe_u32", vt[5], "v0", 5, 1); a.v("v_lshlrev_b32", vt[5], 4, vt[5]); a.v("v_add_u32", vt[4], vt[4], vt[5])
        a.add(I(f"buffer_store_dwordx4 v[{PK}:{PK+3}], {vt[4]}, {srd(S_OUT)}, {T2} offen", "vmem_store", R("v", PK, 4) + [("v", V_T + 4)], []))
    S_GW = S_SOFF
    def tail(last_side, st_):
        for f in last_side: f()
        st_("endop")
        a.s("s_lshl_b32", sr(S_GW), sr(S_J), 2); a.s("s_add_u32", sr(S_GW), sr(S_GW), sr(S_W))
        a.s("s_cmp_ge_u32", sr(S_GW), 40); a.raw("s_cbranch_scc1 L_noA1", "branch")
        a.wait_vm(tokA[0])
        flags_ok(VFA, "L_slowA")
        a.raw("s_branch L_fastA", "branch")
        a.label("L_slowA")
        poll(0, "A")
        a.label("L_fastA")
        chunk_addr(sr(S_GW), 0)
        red_loads()
        a.raw("s_waitcnt vmcnt(16)", "wait")
        a.raw("s_branch L_joinA", "branch")
        a.label("L_noA1")
        a.raw("s_waitcnt vmcnt(0)", "wait")
        a.label("L_joinA")
        a.barrier(); st_("stored")
        flag_store(128)
        a.s("s_cmp_ge_u32", sr(S_GW), 40); a.raw("s_cbranch_scc1 L_noA2", "branch")
        red_sum_store()
        a.label("L_noA2")
        st_("redA")
        a.s("s_cmp_lt_u32", sr(S_GW), 24); a.raw("s_cbranch_scc1 L_fin", "branch")
        poll(128, "B")
        st_("synced")
        a.s("s_sub_u32", T0, 63, sr(S_GW))
        chunk_addr(T0, 5)
        red_loads()
        red_sum_store()
        a.label("L_fin")
    program(0)
    if stamps:
        a.raw("s_waitcnt vmcnt(0)", "wait"); stamp("end")
        a.s("s_lshl_b32", T0, "s2", 2); a.s("s_add_u32", T0, T0, sr(S_W)); a.s("s_lshl_b32", T0, T0, 9)
        a.s("s_add_u32", sr(S_F), "s18", 0x4000000); a.s("s_addc_u32", sr(S_F + 1), "s19", 0); a.s("s_and_b32", sr(S_F + 1), sr(S_F + 1), "0xffff")
        a.s("s_mov_b32", sr(S_F + 2), 1024 * 512)
        a.v("v_and_b32", vt[0], 63, "v0"); a.v("v_lshlrev_b32", vt[0], 2, vt[0]); a.nop(4)
        a.raw(f"buffer_store_dword v{V_ST}, {vt[0]}, {srd(S_F)}, {T0} offen", "vmem_store")
        a.raw(f"buffer_store_dword v{V_ST+1}, {vt[0]}, {srd(S_F)}, {T0} offen offset:256", "vmem_store")
    a.label("L_end"); a.raw("s_endpgm", "other"); a.label("L_codeend")
    a.finalize()
    hdr = [f"; @launch grid=(256,1,1) block=(256,1,1) lds=163840", '.amdgcn_target "amdgcn-amd-amdhsa--gfx950"', ".text",
           f".set CPF_LINES, ((L_codeend-{KN})/128+32)/32", f".globl {KN}", ".p2align 8", f".type {KN},@function", f"{KN}:"]
    ftr = ['.section .rodata,"a"', ".p2align 6", f".amdhsa_kernel {KN}",
           "  .amdhsa_next_free_vgpr 512", "  .amdhsa_next_free_sgpr 100", "  .amdhsa_accum_offset 256",
           "  .amdhsa_group_segment_fixed_size 0", "  .amdhsa_kernarg_size 64", "  .amdhsa_user_sgpr_count 2",
           "  .amdhsa_user_sgpr_kernarg_segment_ptr 1", "  .amdhsa_system_sgpr_workgroup_id_x 1", ".end_amdhsa_kernel"]
    txt = "\n".join(l.strip() if not l.startswith(";") else l for l in a.text().splitlines() if not l.strip().startswith("; ----")) + "\n"
    open(name, "w").write("\n".join(hdr) + "\n" + txt + "\n".join(ftr) + "\n")
    print(name, "instrs:", len(a.ins), "steps:", NS, "stamps:", stamp_n[0])
    return stamp_names

if __name__ == "__main__":
    XO = ["x.0", "wq0.0", "x.1", "wq0.1"] + [f"x.{t}" for t in range(2, 10)]
    base = dict(xall=True, early={}, init_order=XO, ninit=4, nfirst=2, front=True, fixed={"k0.0": 6, "k0.1": 8})
    gen("v7.s", verbose=False, opt=base)
    names = gen("v7_st.s", stamps=True, opt=base)
    open("v7_steps.txt", "w").write("\n".join(names))
    o = dict(base); o["fa_step"] = "Op1.8"; gen("v7b.s", opt=o)
    o = dict(base); o["fixed"] = {"k0.0": 8, "k0.1": 9}; gen("v7c.s", opt=o)
    o = dict(base); o["PF"] = 4; gen("v7d.s", opt=o)
    o = dict(base); o["maxlead"] = 5; gen("v7e.s", opt=o)
```

```python
def run(gen, base):
    b1 = dict(base, tail5=True, cpf_top=True, rot2=True)
    b2 = dict(b1, fixed={}, rpark=("k", "v"), vpark=True, pre_only=True, maxunits=36, sep_last=True, lead_kv=16, lead_w=5)
    def pre(n, s0, d): return {f"k0.{i}": s0 + d * i for i in range(n)}
    z3 = dict(b2, pre=pre(3, 2, 2), lead_w1=5, xpipe=True, op1_spread=True, kvrot=3)
    gen("p1.s", opt=dict(z3, pks=True))
    names = gen("p_st.s", stamps=True, opt=dict(z3, pks=True))
    open("p_steps.txt", "w").write("\n".join(names))
```

```python
import sys, math, struct
from asmlib import *

KN = "standalone__gqa_block_cached__near_ridge_kernel"
UNIT = 2048
NUNIT = 80
def f32bits(x): return struct.unpack("<I", struct.pack("<f", x))[0]

V_KV = 1; V_WQ = 7; V_E = 13; V_O = 14
V_BK = 15; V_BV = 16; V_BQ = 17; V_BX = 18; V_BO = 19
V_W = 20
V_M = 28; V_MC = 29; V_L = 30; V_RINV = 31
V_T = 32
V_L16 = 48
V_XA = 49
V_ST = 52
V_DUM = 54; V_XP = 55; V_L4 = 17
V_A = 56; NRING = 6
V_Q = 80
V_S = 128
A_OUT = 0; A_X = 0
A_QACC = 160; A_OF = 160
def A_O(h): return 0 if h == 0 else 160

S_K = 20; S_V = 24; S_WQ = 28; S_WO = 32; S_X = 36; S_P = 40; S_F = 44; S_OUT = 48; S_DBG = 52
S_B = 56; S_J = 57; S_W = 58; S_C = 60; S_SOFF = 61; S_T0 = 62; S_T1 = 63
S_NONCE = 64; S_PB = 66; S_SAVE = 68; S_TM = 70; S_T2 = 72; S_T3 = 73
S_RH128 = 74; S_PVB = 75; S_CP = 76; S_PVC = 81
S_ROT = 84; S_ROTO = 59; S_KVR = 67
S_LR = 82; S_LA = 83
S_QR = 85; S_QA = 86
S_OR = 87; S_OA = 88
S_XL = 89; S_XG = 90
S_R8 = 91
S_ST = 94
def srd(n): return f"s[{n}:{n+3}]"
def sr(n): return f"s{n}"
def vr(n): return f"v{n}"

class Step:
    def __init__(self, kind, h=0, t=0):
        self.kind = kind; self.h = h; self.t = t; self.bufs = []
        self.nm = 12 if kind in ("Qp", "QK", "PV", "Op") else 0
    def __repr__(self): return f"{self.kind}{self.h}.{self.t}"
class Buf:
    def __init__(self, name, units, need, kind=None, h=0, t=0):
        self.name = name; self.units = units; self.need = need; self.kind = kind; self.h = h; self.t = t
        self.issue = None; self.addr = None; self.tok = {}; self.mode = None
        self.reg = None; self.flush = None

DEF = dict(k0="K0 W0 K1 W1 K2 W2 K3 W3 K4 W4 K5 K6 W5 K7",
           v0="V0 W6 V1 W7 V2 W8 V3 W9 V4 V5 V6 V7",
           k1="K0 K1 K2 W0 K3 W1 K4 W2 K5 W3 K6 K7 W4",
           v1="V0 W5 V1 W6 V2 W7 V3 W8 V4 W9 V5 V6 V7",
           PF=5, rot=True, nt=True, cpf=True, wpf=False, maxlead=8, maxunits=24,
           early={"k0.0": "first", "k0.1": 3}, nfirst=2, ahead_min=2,
           st_sched={"Op1.5": [0, 1], "Op1.6": [2, 3], "Op1.7": [4, 5], "Op1.8": [6, 7], "Op1.9": [8], "end": [9]}, tail4=False, dma_pseudo=(), kv_late=False, xread=None, cpf_top=False, pk=True, tail3=True, xall=False, front=False, ninit=3, xpf=False, wq_pf=None, wo_pf=None, tail2=True)

def build_sequence(opt):
    seq = []
    def add(k, h=0, t=0): seq.append(Step(k, h, t))
    for t in range(10): add("Qp", 0, t)
    add("X1")
    def phase(txt, kh, wk, wh):
        for x in txt.split():
            if x[0] == "K": add("QK", kh, int(x[1:]))
            elif x[0] == "V": add("PV", kh, int(x[1:]))
            else: add(wk, wh, int(x[1:]))
    phase(opt["k0"], 0, "Qp", 1)
    add("M1", 0); add("M2", 0)
    phase(opt["v0"], 0, "Qp", 1)
    phase(opt["k1"], 1, "Op", 0)
    add("M2", 1)
    phase(opt["v1"], 1, "Op", 0)
    add("X3"); add("X4")
    for t in range(10): add("Op", 1, t)
    return seq

def plan(opt, verbose=False):
    seq = build_sequence(opt); NS = len(seq)
    idx = {repr(s): i for i, s in enumerate(seq)}
    occ = [[False] * NUNIT for _ in range(NS + 2)]
    def find(units, s0, s1, top=False):
        NP = NUNIT if units == 1 else NUNIT - 2
        rng = range(NP - units, -1, -1) if (top or units == 1) else range(0, NP - units + 1)
        if opt.get("aligned") and units % 12 == 0: rng = range(72 - units, -1, -12) if top else range(0, 72 - units + 1, 12)
        for base in rng:
            if all(not occ[s + 1][base + u] for s in range(s0, s1 + 1) for u in range(units)): return base
        return None
    def reserve(buf, s0, s1, top=False):
        base = find(buf.units, s0, s1, top)
        if base is None: return False
        for s in range(s0, s1 + 1):
            for u in range(buf.units): occ[s + 1][base + u] = True
        buf.addr = base * UNIT; buf.issue = s0
        return True
    X = {}
    def xbuf(name, units, s0, s1):
        b = Buf(name, units, s1); assert reserve(b, s0, s1), name; X[name] = b
    tiles = []
    for i, st in enumerate(seq):
        if st.kind == "Qp":
            b1 = Buf(f"wq{st.h}.{st.t}", 12, i, "wq", st.h, st.t); st.bufs = [b1]; tiles.append(b1)
            if st.h == 0:
                xr_ = (opt["xread"] or {}).get(st.t, i)
                b2 = Buf(f"x.{st.t}", 4, xr_, "x", 0, st.t); st.bufs.append(b2); tiles.append(b2)
        elif st.kind == "QK": b = Buf(f"k{st.h}.{st.t}", 12, i, "k", st.h, st.t); st.bufs = [b]; tiles.append(b)
        elif st.kind == "PV": b = Buf(f"v{st.h}.{st.t}", 12, i, "v", st.h, st.t); st.bufs = [b]; tiles.append(b)
        elif st.kind == "Op": b = Buf(f"wo{st.h}.{st.t}", 12, i, "wo", st.h, st.t); st.bufs = [b]; tiles.append(b)
    def compute_before(i, n):
        s = i
        while n > 0 and s >= 0:
            s -= 1
            if s >= 0 and seq[s].nm > 0: n -= 1
        return s
    i = idx["X10.0"]; xbuf("xQ0", 12, i, i)
    i = idx["Qp1.9"]; xbuf("xQ1", 12, i + 1, i + 2)
    i = idx["M10.0"]; xbuf("m0", 1, i, i + 1)
    i = idx["PV0.6"]; xbuf("l0", 1, i, idx["QK1.1"])
    i = idx["QK1.0"]; xbuf("xO0a", 24, i, i + 2)
    i = idx["QK1.7"]; xbuf("m1", 1, i + 1, idx["M21.0"])
    i = idx["PV1.6"]; xbuf("l1", 1, i, idx["X40.0"])
    i = idx["X30.0"]; xbuf("xO1a", 24, i, i + 2)
    byname = {b.name: b for b in tiles}
    early = opt["early"]
    for b in tiles: b.mode = "a"
    for n, when in early.items():
        b = byname[n]; s0 = -1 if when == "first" else when
        assert reserve(b, s0, b.need, top=True), n
    last = -1; per_step = {}; lastc = {False: -1, True: max([-1] + list(opt.get("pre", {}).values()))}
    nfirst = opt["nfirst"]
    fixed = opt.get("fixed", {})
    if opt["xall"]:
        for b in tiles:
            if b.kind == "x":
                if opt.get("aligned"):
                    base = 72 if b.t == 0 else 72 - 4 * b.t
                    for s_ in range(-1, b.need + 1):
                        for u in range(4):
                            assert not occ[s_ + 1][base + u]; occ[s_ + 1][base + u] = True
                    b.addr = base * UNIT; b.issue = (opt.get("xissue") or {}).get(b.t, -1)
                else: assert reserve(b, -1, b.need, top=True), b.name
    rslots = []
    if opt.get("rpark"):
        rslots = [("a", 208, idx["PV1.0"] - 1), ("a", 232, idx["PV1.0"] - 1)]
        if opt.get("vpark"):
            rslots = [("v", 128 + 24 * k, idx[f"QK0.{(24 * k) // 16}"] - 1) for k in range(5)] + rslots
    rocc = [[False] * (NS + 2) for _ in rslots]
    def try_park(b, s):
        if b.kind not in opt.get("rpark", ()): return False
        for back in opt.get("rback", (2, 1)):
            f = compute_before(b.need, back)
            if f < s + opt.get("rmin", 2) or f < 0: continue
            for k, (kind, base, lim) in enumerate(rslots):
                if f > lim or any(rocc[k][t + 1] for t in range(s, f + 1)): continue
                if find(b.units, f, b.need) is None: continue
                reserve(b, f, b.need)
                for t in range(s, f + 1): rocc[k][t + 1] = True
                b.issue = s; b.reg = (kind, base); b.flush = f
                return True
        return False
    for n, s0 in opt.get("pre", {}).items():
        assert try_park(byname[n], s0), n
        per_step[s0] = per_step.get(s0, 0) + 12
    for b in tiles:
        if b.name in early or b.addr is not None: continue
        iskv = b.kind in ("k", "v")
        if opt.get("sep_last"):
            lw = opt.get("lead_w1", opt["lead_w"]) if (b.kind == "wo" and b.h == 1) else opt["lead_w"]
            s = max(lastc[iskv], b.need - (opt["lead_kv"] if iskv else lw), -1)
        else: s = max(last, b.need - opt["maxlead"], -1)
        if b.kind in ("wq", "x") and b.h == 0 and b.t < nfirst: s = -1
        else: s = max(s, 0)
        if b.name in fixed: s = max(s, fixed[b.name])
        while s < b.need:
            ok = (s < 0 or seq[s].nm > 0 or seq[s].kind in opt["dma_pseudo"])
            if ok and s >= 0 and per_step.get(s, 0) + b.units > opt["maxunits"]: ok = False
            if ok and opt.get("rprefer") and b.need - s >= opt["rprefer"] and s >= 0 and try_park(b, s): break
            if ok and reserve(b, s, b.need): break
            if ok and s >= 0 and not opt.get("pre_only") and try_park(b, s): break
            s += 1
        assert b.addr is not None, b.name
        per_step[b.issue] = per_step.get(b.issue, 0) + b.units
        last = b.issue; lastc[iskv] = b.issue
    issue_at = {}
    order = [byname[n] for n, w in early.items() if w == "first"] + [b for b in tiles if b.name not in early or early[b.name] != "first"]
    if opt.get("init_order"):
        io = [byname[n] for n in opt["init_order"]]
        order = io + [b for b in order if b not in io]
    for b in order: issue_at.setdefault(b.issue, []).append(b)
    for s_, lst in issue_at.items():
        if s_ >= 0: lst.sort(key=lambda b: (b.name in early and early[b.name] != "first"))
    if verbose:
        for i, st in enumerate(seq):
            print(i, st, [(b.name, b.issue, b.addr // UNIT) + ((b.reg, b.flush) if b.reg else ()) for b in st.bufs], "issues:", [b.name for b in issue_at.get(i, [])], "occ", sum(occ[i + 1]))
        print("prologue:", [b.name for b in issue_at.get(-1, [])])
    return seq, idx, X, issue_at

def gen(name, stamps=False, opt=None, verbose=False):
    o = dict(DEF); o.update(opt or {}); opt = o
    seq, idx, X, issue_at = plan(opt, verbose)
    NS = len(seq); PF = opt["PF"]
    ntf = "nt" if opt["nt"] else ""
    T0, T1, T2, T3 = sr(S_T0), sr(S_T1), sr(S_T2), sr(S_T3)
    a = Asm()
    stamp_n = [0]; stamp_names = []
    def stamp(nm="-", record=True):
        if not stamps: return
        k = stamp_n[0]; stamp_n[0] += 1
        if record: stamp_names.append(nm)
        a.raw(f"s_memtime s[{S_ST}:{S_ST+1}]", "smem")
        a.wait_lds_all()
        a.s("s_sub_u32", sr(S_ST), sr(S_ST), sr(S_TM))
        a.add(I(f"v_writelane_b32 v{V_ST + k // 64}, s{S_ST}, {k % 64}", "valu", [("s", S_ST)], [("v", V_ST + k // 64)]))

    a.s("s_cmp_ge_u32", "s2", 256)
    a.raw("s_cbranch_scc1 L_end", "branch")
    a.raw("s_load_dwordx16 s[4:19], s[0:1], 0", "smem")
    if stamps: a.raw(f"s_memtime s[{S_TM}:{S_TM+1}]", "smem")
    if opt["cpf_top"]:
        a.raw(f"s_getpc_b64 s[{S_CP}:{S_CP+1}]", "salu")
        a.label("L_pc")
        a.raw(f"s_sub_u32 s{S_CP}, s{S_CP}, L_pc-{KN}", "salu"); a.raw(f"s_subb_u32 s{S_CP+1}, s{S_CP+1}, 0", "salu")
        a.raw(f"s_and_b32 s{S_CP+1}, s{S_CP+1}, 0xffff", "salu"); a.raw(f"s_mov_b32 s{S_CP+2}, L_codeend-{KN}", "salu")
        a.raw(f"s_mov_b32 s{S_CP+3}, 0x20000", "salu"); a.raw("s_bfe_u32 s80, s2, 0x10003", "salu")
        a.raw("s_lshl_b32 s80, s80, 15", "salu")
        a.v("v_lshlrev_b32", vr(V_T), 7, "v0")
        a.raw(f"buffer_load_dword v{V_DUM}, v{V_T}, s[{S_CP}:{S_CP+3}], s80 offen", "vmem_load")
    a.s("s_lshr_b32", sr(S_B), "s2", 4)
    a.s("s_and_b32", T0, "s2", 7); a.s("s_lshl_b32", T0, T0, 1); a.s("s_bfe_u32", T1, "s2", "0x10003"); a.s("s_or_b32", sr(S_J), T0, T1)
    tv = [f"v{V_S+i}" for i in range(20)]
    vl, vw, vi32, vhf, vg1, vrr, vcc_, vf, vlp, vqh, vrh, t0, t1, t2, t3, t4 = tv[:16]
    a.v("v_and_b32", vl, 63, "v0"); a.v("v_lshrrev_b32", vw, 6, "v0")
    a.v("v_readfirstlane_b32", sr(S_W), vw)
    a.v("v_lshlrev_b32", vr(V_L16), 4, vl)
    def f16_of(dst, r, tmp):
        a.v("v_and_b32", dst, 2, r); a.v("v_lshlrev_b32", dst, 5, dst)
        a.v("v_and_b32", tmp, 4, r); a.v("v_lshlrev_b32", tmp, 3, tmp); a.v("v_or_b32", dst, dst, tmp)
        a.v("v_and_b32", tmp, 8, r); a.v("v_lshlrev_b32", tmp, 1, tmp); a.v("v_or_b32", dst, dst, tmp)
    for n in range(6):
        a.v("v_add_u32", t0, n * 64, vl)
        a.v("v_mul_u32_u24", t1, 2731, t0); a.v("v_lshrrev_b32", t1, 16, t1)
        f16_of(vf, t1, t2)
        a.v("v_lshlrev_b32", t0, 4, t0); a.v("v_xor_b32", t0, t0, vf)
        a.v("v_subrev_u32", vr(V_KV + n), (n & 3) * 1024, t0)
        a.v("v_mul_u32_u24", t2, 12288 - 384, t1); a.v("v_add_u32", t2, t2, t0)
        a.v("v_subrev_u32", vr(V_WQ + n), (n & 3) * 1024, t2)
    for od, reg in ((0, V_E), (1, V_O)):
        a.v("v_lshrrev_b32", t1, 3, vl)
        if od: a.v("v_add_u32", t1, 8, t1)
        f16_of(vf, t1, t2)
        a.v("v_and_b32", t0, 7, vl); a.v("v_lshlrev_b32", t0, 4, t0); a.v("v_xor_b32", t0, t0, vf)
        a.v("v_mul_u32_u24", t1, 1280, t1); a.v("v_add_u32", vr(reg), t0, t1)
        if od: a.v("v_subrev_u32", vr(reg), 1024, vr(reg))
    a.s("s_and_b32", T0, sr(S_W), 1)
    a.s("s_mul_i32", sr(S_LR), T0, 12288); a.s("s_mul_i32", sr(S_LA), sr(S_W), 6144)
    a.s("s_mul_i32", sr(S_QR), T0, 32 * 12288); a.s("s_mul_i32", sr(S_QA), sr(S_W), 16 * 12288)
    a.s("s_mul_i32", sr(S_OR), T0, 96 * 1280); a.s("s_mul_i32", sr(S_OA), sr(S_W), 48 * 1280)
    a.s("s_lshl_b32", sr(S_XL), sr(S_W), 11); a.s("s_mul_i32", sr(S_XG), sr(S_W), 16 * 1280)
    a.s("s_lshr_b32", T0, sr(S_W), 1)
    a.s("s_lshl_b32", sr(S_RH128), T0, 7)
    a.s("s_lshl_b32", T1, T0, 8); a.s("s_sub_u32", sr(S_PVB), 128, T1)
    a.s("s_mul_i32", T1, T0, 384); a.s("s_sub_u32", sr(S_PVC), 256, T1)
    a.s("s_cmp_ge_u32", sr(S_B), 10); a.s("s_cselect_b32", T0, 10, 0); a.s("s_sub_u32", sr(S_ROT), sr(S_B), T0)
    a.s("s_mov_b32", sr(S_ROTO), sr(S_ROT))
    if opt.get("kvrot") == 1: a.s("s_add_u32", sr(S_KVR), sr(S_B), sr(S_J))
    elif opt.get("kvrot") == 2: a.s("s_mov_b32", sr(S_KVR), sr(S_B))
    elif opt.get("kvrot") == 3: a.s("s_lshr_b32", sr(S_KVR), "s2", 3)
    if opt.get("rot2"):
        a.s("s_bfe_u32", T0, "s2", "0x10003"); a.s("s_mul_i32", T0, T0, 5); a.s("s_add_u32", sr(S_ROT), sr(S_B), T0)
        for _ in range(2):
            a.s("s_cmp_ge_u32", sr(S_ROT), 10); a.s("s_cselect_b32", T0, 10, 0); a.s("s_sub_u32", sr(S_ROT), sr(S_ROT), T0)
    if not opt["rot"]: a.s("s_mov_b32", sr(S_ROT), 0)
    a.raw("s_waitcnt lgkmcnt(0)", "wait")
    stamp("kernarg")
    def mk_srd(dst, ptr, off_lo=None, off_hi=None, size=0):
        if off_lo is None:
            a.s("s_mov_b32", sr(dst), sr(ptr)); a.s("s_and_b32", sr(dst + 1), sr(ptr + 1), "0xffff")
        else:
            a.s("s_add_u32", sr(dst), sr(ptr), off_lo)
            a.s("s_addc_u32", sr(dst + 1), sr(ptr + 1), off_hi if off_hi is not None else 0)
            a.s("s_and_b32", sr(dst + 1), sr(dst + 1), "0xffff")
        a.s("s_mov_b32", sr(dst + 2), size); a.s("s_mov_b32", sr(dst + 3), "0x20000")
    a.s("s_lshl_b32", T2, sr(S_B), 4); a.s("s_add_u32", T2, T2, sr(S_J))
    a.s("s_mul_i32", T0, T2, 393216); a.s("s_mul_hi_u32", T1, T2, 393216)
    mk_srd(S_K, 6, T0, T1, 393216); mk_srd(S_V, 8, T0, T1, 393216)
    a.s("s_mul_i32", T0, sr(S_J), 768); mk_srd(S_WQ, 10, T0, None, 0); a.s("s_sub_u32", sr(S_WQ + 2), 7864320, T0)
    a.s("s_mul_i32", T0, sr(S_B), 81920); mk_srd(S_X, 4, T0, None, 81920)

    def late_setup():
        a.v("v_and_b32", vi32, 31, vl); a.v("v_lshrrev_b32", vhf, 5, vl)
        a.v("v_bfe_u32", vg1, vl, 4, 1); a.v("v_bfe_u32", vrr, vl, 2, 2); a.v("v_and_b32", vcc_, 3, vl)
        a.v("v_and_b32", vqh, 1, vw); a.v("v_lshrrev_b32", vrh, 1, vw)
        a.v("v_lshlrev_b32", vlp, 5, vg1); a.v("v_lshlrev_b32", t0, 3, vcc_); a.v("v_add_u32", vlp, vlp, t0)
        f16_of(vf, vi32, t2)
        a.v("v_lshlrev_b32", t0, 4, vhf); a.v("v_xor_b32", t0, t0, vf)
        a.v("v_lshlrev_b32", t1, 5, vrh); a.v("v_add_u32", t1, t1, vi32); a.v("v_mul_u32_u24", t1, 384, t1); a.v("v_add_u32", vr(V_BK), t0, t1)
        a.v("v_lshlrev_b32", t1, 5, vqh); a.v("v_add_u32", t1, t1, vi32); a.v("v_lshlrev_b32", t1, 7, t1); a.v("v_add_u32", vr(V_BX), t0, t1)
        a.v("v_and_b32", vf, 2, vrr); a.v("v_lshlrev_b32", vf, 5, vf); a.v("v_lshlrev_b32", t2, 5, vhf); a.v("v_or_b32", vf, vf, t2)
        a.v("v_lshlrev_b32", t0, 6, vrh); a.v("v_add_u32", t0, t0, vlp); a.v("v_xor_b32", t0, t0, vf)
        a.v("v_lshlrev_b32", t1, 2, vhf); a.v("v_add_u32", t1, t1, vrr)
        a.v("v_lshlrev_b32", t2, 7, t1); a.v("v_add_u32", vr(V_BO), t0, t2)
        a.v("v_lshlrev_b32", t2, 5, vrh); a.v("v_add_u32", t1, t1, t2); a.v("v_mul_u32_u24", t1, 384, t1)
        a.v("v_add_u32", t1, t1, t0); a.v("v_lshlrev_b32", t2, 7, vrh); a.v("v_add_u32", vr(V_BV), t1, t2)
        a.v("v_and_b32", vf, 2, vrr); a.v("v_lshlrev_b32", vf, 5, vf); a.v("v_lshlrev_b32", t2, 4, vhf); a.v("v_or_b32", vf, vf, t2)
        a.v("v_lshlrev_b32", t0, 6, vrh); a.v("v_add_u32", t0, t0, vlp); a.v("v_xor_b32", t0, t0, vf)
        a.v("v_lshlrev_b32", t1, 3, vhf); a.v("v_add_u32", t1, t1, vrr); a.v("v_mul_u32_u24", t1, 384, t1)
        a.v("v_add_u32", t1, t1, t0); a.v("v_lshlrev_b32", t2, 7, vrh); a.v("v_add_u32", vr(V_BQ), t1, t2)
        a.v("v_mul_u32_u24", t0, 12288, vqh); a.v("v_add_u32", vr(V_XA + 1), t0, vr(V_L16))
        a.v("v_mul_u32_u24", t1, 6144, vrh); a.v("v_add_u32", vr(V_XA), vr(V_XA + 1), t1)
        a.v("v_mul_u32_u24", t0, 12288, vw); a.v("v_add_u32", vr(V_XA + 2), t0, vr(V_L16))
        a.v("v_xor_b32", t0, 2, vw); a.v("v_mul_u32_u24", t0, 12288, t0); a.v("v_add_u32", vr(V_XP), t0, vr(V_L16))
        a.s("s_mul_i32", T0, sr(S_J), 491520); mk_srd(S_WO, 12, T0, None, 491520)
        a.s("s_mul_i32", T0, sr(S_B), 81920); mk_srd(S_OUT, 14, T0, None, 81920)
        a.s("s_mul_i32", T0, sr(S_B), 16 * 81920); mk_srd(S_P, 18, T0, None, 16 * 81920)
        if opt["tail4"]:
            a.s("s_mul_i32", T0, sr(S_B), 331776); a.s("s_add_u32", T0, T0, 0x2000000); mk_srd(S_F, 18, T0, None, 327680 + 256)
        else:
            a.s("s_lshl_b32", T0, sr(S_B), 10); a.s("s_add_u32", T0, T0, 0x2000000); mk_srd(S_F, 18, T0, None, 1024)
        mk_srd(S_DBG, 16, None, None, 256)
        a.s("s_mov_b32", sr(S_C), hex(f32bits(math.log2(math.e) / math.sqrt(192.0))))
        a.s("s_mul_i32", sr(S_PB), sr(S_J), 81920); a.s("s_lshl_b32", T0, sr(S_W), 11); a.s("s_add_u32", sr(S_PB), sr(S_PB), T0)
    if stamps:
        a.v("v_mov_b32", vr(V_ST + 1), 0)

    def rot_tile(t, dst, out=False):
        a.s("s_add_u32", dst, sr(S_ROTO if out else S_ROT), t); a.s("s_cmp_ge_u32", dst, 10); a.s("s_cselect_b32", T3, 10, 0); a.s("s_sub_u32", dst, dst, T3)

    base_stamp = stamp_n[0]
    def program(role):
        a.vm_issued = 0; a.vm_done = 0; a.lds_issued = 0; a.lds_done = 0
        stamp_n[0] = base_stamp
        rec = (role == 0)
        def st_(nm): stamp(nm, rec)
        toks = {}
        def mine(b): return b.mode == role or b.mode == "a"
        def dma_items(b):
            if not mine(b): return []
            items = []; base = b.addr; allm = (b.mode == "a")
            np_ = 6 if allm else 12
            if b.kind in ("k", "v", "wq"):
                srdn = {"k": S_K, "v": S_V, "wq": S_WQ}[b.kind]; vo = V_WQ if b.kind == "wq" else V_KV
                fl = ntf if b.kind != "wq" else opt.get("wfl", "")
                gstride = 16 * 12288 if b.kind == "wq" else 6144
                lds0 = S_LA if allm else S_LR
                def mk(m):
                    g, mm = divmod(m, 6)
                    def f():
                        if m == 0:
                            if b.kind == "wq":
                                rot_tile(b.t, sr(S_SOFF)); a.s("s_mul_i32", sr(S_SOFF), sr(S_SOFF), 64 * 12288)
                                a.s("s_add_u32", sr(S_SOFF), sr(S_SOFF), sr(S_QA if allm else S_QR))
                                if b.h: a.s("s_add_u32", sr(S_SOFF), sr(S_SOFF), 384)
                            elif opt.get("kvrot"):
                                a.s("s_add_u32", sr(S_SOFF), sr(S_KVR), b.t); a.s("s_and_b32", sr(S_SOFF), sr(S_SOFF), 7)
                                a.s("s_mul_i32", sr(S_SOFF), sr(S_SOFF), 24576); a.s("s_add_u32", sr(S_SOFF), sr(S_SOFF), sr(lds0))
                                if b.h: a.s("s_add_u32", sr(S_SOFF), sr(S_SOFF), 196608)
                            else: a.s("s_add_u32", sr(S_SOFF), sr(lds0), b.h * 196608 + b.t * 24576)
                        if m == 6: a.s("s_add_u32", sr(S_SOFF), sr(S_SOFF), gstride)
                        if b.reg:
                            a.bload("buffer_load_dwordx4", rs(b.reg[0], b.reg[1] + 4 * m, 4), vr(vo + mm), srd(srdn), sr(S_SOFF), (mm & 3) * 1024, fl)
                        else:
                            if mm in (0, 4): a.s("s_add_u32", "m0", sr(lds0), base + g * 6144 + (4096 if mm == 4 else 0))
                            a.dma(vr(vo + mm), srd(srdn), sr(S_SOFF), (mm & 3) * 1024, fl)
                        if m == np_ - 1: toks[b.name] = a.vm_issued
                    return f
                for m in range(np_): items.append(mk(m))
            elif b.kind == "wo":
                def mk(m):
                    def f():
                        if m == 0:
                            rot_tile(b.t, sr(S_SOFF), True); a.s("s_lshl_b32", sr(S_SOFF), sr(S_SOFF), 7)
                            a.s("s_add_u32", sr(S_SOFF), sr(S_SOFF), sr(S_OA if allm else S_OR))
                            if b.h: a.s("s_add_u32", sr(S_SOFF), sr(S_SOFF), 245760)
                        if m % 4 == 0 and not b.reg: a.s("s_add_u32", "m0", sr(S_LA if allm else S_LR), base + m * 1024)
                        d = (m >> 1) * 20480 - (m & 3) * 1024 + (1024 if m & 1 else 0)
                        if d: a.s("s_add_u32", T2, sr(S_SOFF), d); so = T2
                        else: so = sr(S_SOFF)
                        if b.reg: a.bload("buffer_load_dwordx4", rs(b.reg[0], b.reg[1] + 4 * m, 4), vr(V_O if m & 1 else V_E), srd(S_WO), so, (m & 3) * 1024, opt.get("wfl", ""))
                        else: a.dma(vr(V_O if m & 1 else V_E), srd(S_WO), so, (m & 3) * 1024, opt.get("wfl", ""))
                        if m == np_ - 1: toks[b.name] = a.vm_issued
                    return f
                for m in range(np_): items.append(mk(m))
            elif b.kind == "x":
                def mk(m):
                    def f():
                        if m == 0:
                            rot_tile(b.t, sr(S_R8)); a.s("s_lshl_b32", sr(S_R8), sr(S_R8), 7); a.s("s_add_u32", sr(S_R8), sr(S_R8), sr(S_XG))
                            a.s("s_add_u32", "m0", sr(S_XL), base)
                        a.dma(vr(V_O if m & 1 else V_E), srd(S_X), sr(S_R8), m * 1024, opt.get("xfl", ""))
                        if m == 1: toks[b.name] = a.vm_issued
                    return f
                for m in range(2): items.append(mk(m))
            return items

        pro = issue_at.get(-1, [])
        n1 = opt["ninit"]
        if opt["xpf"]:
            a.v("v_lshlrev_b32", vr(V_T), 3, vr(V_L16))
            a.s("s_mul_i32", T2, sr(S_W), 20480)
            for k in range(3):
                a.bload("buffer_load_dword", vr(V_DUM), vr(V_T), srd(S_X), T2, 0, "")
                if k < 2: a.s("s_add_u32", T2, T2, 8192)
        if opt.get("pst"): st_("srd")
        if opt.get("tlbw"):
            a.v("v_mov_b32", vr(V_T + 1), 0)
            for sd_, offs in ((S_K, (0, 196608, 393212)), (S_V, (0, 196608, 393212))):
                for o_ in offs:
                    a.s("s_mov_b32", T2, o_)
                    a.bload("buffer_load_dword", vr(V_DUM), vr(V_T + 1), srd(sd_), T2, 0, "")
        for b in pro[:n1]:
            for f in dma_items(b): f()
            if opt.get("pst"): st_("i_" + b.name)
        st_("dma_issued")
        late_setup()
        if opt.get("pst"): st_("late")
        if opt.get("tlbw"):
            for sd_, offs in ((S_WO, (0, 491516)), (S_P, (0, 16 * 81920 - 4)), (S_F, (0,)), (S_OUT, (0, 81916))):
                for o_ in offs:
                    a.s("s_mov_b32", T2, o_)
                    a.bload("buffer_load_dword", vr(V_DUM), vr(V_T + 1), srd(sd_), T2, 0, "")
        for b in pro[n1:]:
            for f in dma_items(b): f()
        if opt.get("pst"): st_("xall")
        def wpf_items():
            p0, p1, p2 = vr(V_T + 13), vr(V_T + 14), vr(V_T + 15)
            def f1():
                a.v("v_min_u32", p0, 239, "v0")
                a.v("v_mul_u32_u24", p1, 10923, p0); a.v("v_lshrrev_b32", p1, 16, p1)
                a.v("v_mul_u32_u24", p2, 6, p1); a.v("v_sub_u32", p2, p0, p2); a.v("v_lshlrev_b32", p2, 7, p2)
                a.v("v_mul_u32_u24", p1, 12288, p1); a.v("v_add_u32", p1, p1, p2)
                a.s("s_mul_i32", T2, sr(S_B), 40 * 12288)
                a.bload("buffer_load_dword", vr(V_DUM), p1, srd(S_WQ), T2, 0, "")
            def f2():
                a.v("v_min_u32", p0, 239, "v0"); a.v("v_lshlrev_b32", p2, 7, p0)
                a.s("s_mul_i32", T3, sr(S_B), 30720)
                a.bload("buffer_load_dword", vr(V_DUM), p2, srd(S_WO), T3, 0, "")
            return f1, f2
        if opt["cpf"] and not opt["cpf_top"]:
            a.s("s_cmp_lg_u32", sr(S_W), 3); a.raw("s_cbranch_scc1 L_nocpf", "branch")
            a.raw(f"s_getpc_b64 s[{S_CP}:{S_CP+1}]", "salu")
            a.label("L_pc")
            a.raw(f"s_sub_u32 s{S_CP}, s{S_CP}, L_pc-{KN}", "salu"); a.raw(f"s_subb_u32 s{S_CP+1}, s{S_CP+1}, 0", "salu")
            a.raw(f"s_and_b32 s{S_CP+1}, s{S_CP+1}, 0xffff", "salu"); a.raw(f"s_mov_b32 s{S_CP+2}, L_codeend-{KN}", "salu")
            a.raw(f"s_mov_b32 s{S_CP+3}, 0x20000", "salu"); a.raw("s_bfe_u32 s80, s2, 0x50003", "salu")
            a.raw("s_mul_i32 s80, s80, CPF_LINES*128", "salu")
            a.v("v_lshlrev_b32", vr(V_T), 3, vr(V_L16))
            a.nop(2)
            a.raw(f"buffer_load_dword v{V_DUM}, v{V_T}, s[{S_CP}:{S_CP+3}], s80 offen", "vmem_load")
            a.label("L_nocpf")
        if role == 0:
            a.s("s_or_b32", T0, "s2", sr(S_W)); a.s("s_cmp_lg_u32", T0, 0)
            a.raw("s_cbranch_scc1 L_nononce", "branch")
            a.raw(f"s_memrealtime s[{S_NONCE}:{S_NONCE+1}]", "smem"); a.raw("s_waitcnt lgkmcnt(0)", "wait")
            a.s("s_or_b32", sr(S_NONCE), sr(S_NONCE), 1)
            a.v("v_mov_b32", vr(V_T + 2), sr(S_NONCE)); a.v("v_mov_b32", vr(V_T + 3), sr(S_NONCE + 1)); a.v("v_mov_b32", vr(V_T + 4), 0)
            a.raw(f"buffer_store_dwordx2 v[{V_T+2}:{V_T+3}], v{V_T+4}, {srd(S_DBG)}, 0 offen sc1", "vmem_store")
            a.label("L_nononce")

        def addr_items(i):
            st = seq[i]; W = V_W; its = []; sb = st.bufs[0].addr
            if st.kind == "QK":
                its.append(lambda: a.v("v_add_u32", vr(W), sb, vr(V_BK)))
                for k in (1, 2, 3): its.append(lambda k=k: a.v("v_xor_b32", vr(W + k), 32 * k, vr(W)))
            elif st.kind == "PV":
                its.append(lambda: a.v("v_add_u32", vr(W), sb, vr(V_BV)))
                its.append(lambda: a.v("v_xad_u32", vr(W + 1), vr(W), 64, sr(S_RH128)))
                its.append(lambda: a.v("v_xad_u32", vr(W + 2), vr(W), 64, sr(S_PVB)))
                its.append(lambda: a.v("v_add_u32", vr(W + 3), sr(S_PVC), vr(W)))
                for k in range(4): its.append(lambda k=k: a.v("v_xor_b32", vr(W + 4 + k), 16, vr(W + k)))
            elif st.kind == "Qp":
                its.append(lambda: a.v("v_add_u32", vr(W), sb, vr(V_BQ)))
                its.append(lambda: a.v("v_xad_u32", vr(W + 1), vr(W), 64, sr(S_RH128)))
                for k in range(2): its.append(lambda k=k: a.v("v_xor_b32", vr(W + 2 + k), 32, vr(W + k)))
                if st.h == 0 and st.bufs[1].need == i:
                    sx = st.bufs[1].addr
                    its.append(lambda: a.v("v_add_u32", vr(W + 4), sx, vr(V_BX)))
                    for k in (1, 2, 3): its.append(lambda k=k: a.v("v_xor_b32", vr(W + 4 + k), 32 * k, vr(W + 4)))
            elif st.kind == "Op":
                its.append(lambda: a.v("v_add_u32", vr(W), sb, vr(V_BO)))
                its.append(lambda: a.v("v_xor_b32", vr(W + 1), 16, vr(W)))
            return its
        def frag_spec(i, n):
            st = seq[i]; W = V_W; xb = []
            if st.kind == "QK":
                reads = [("ds_read_b128", 0, 4, vr(W + (n & 3)), 128 * (n >> 2))]
                D = rs("v", V_S + 16 * st.t, 16); B = rs("v", V_Q + 4 * n, 4); C = "0" if n == 0 else D
            elif st.kind == "PV":
                u, tau = n // 6, n % 6
                reg, add = {0: (0, 0), 1: (1, 0), 2: (0, 128), 3: (2, 0), 4: (3, 0), 5: (2, 128)}[tau]
                reads = [("ds_read_b64_tr_b16", 2 * hf, 2, vr(W + reg + 4 * hf), (16 * u + 8 * hf) * 384 + add) for hf in (0, 1)]
                D = rs("a", A_O(st.h) + 16 * tau, 16); B = rs("v", V_S + 16 * st.t + 4 * u, 4)
                C = "0" if (st.t == 0 and u == 0) else D
            elif st.kind == "Qp":
                ks, T = n // 3, n % 3
                reg, add = {0: (0, 0), 1: (1, 0), 2: (0, 128)}[T]
                reads = [("ds_read_b64_tr_b16", 2 * hf, 2, vr(W + reg + 2 * hf), (16 * ks + 4 * hf) * 384 + add) for hf in (0, 1)]
                D = rs("a", A_QACC + 16 * T, 16)
                xr = A_X + 4 * (st.t * 4 + ks); B = rs("a", xr, 4)
                if T == 0 and st.h == 0 and st.bufs[1].need == i: xb = [("ds_read_b128", rs("a", xr, 4), vr(W + 4 + ks), 0)]
                C = "0" if (st.t == 0 and ks == 0) else D
            else:
                reads = [("ds_read_b64_tr_b16", 2 * hf, 2, vr(W + hf), (16 * n + 8 * hf) * 128) for hf in (0, 1)]
                D = rs("a", A_OUT + 16 * st.t, 16)
                B = rs("a", A_OF + 4 * n, 4) if (st.h == 0 and i < idx["M21.0"]) else rs("v", V_Q + 4 * n, 4)
                C = "0" if (st.h == 0 and n == 0) else D
            return reads, xb, D, B, C
        gstart = {}; g = 0
        for i, st in enumerate(seq): gstart[i] = g; g += st.nm
        frag_tok = {}
        def issue_frag(i, n):
            reads, xb, D, B, C = frag_spec(i, n)
            gi = gstart[i] + n; rb = V_A + 4 * (gi % NRING); tok = None
            for (op, dst, addr, off) in xb: a.ds_read(op, dst, addr, off)
            for (op, ro, cnt, addr, off) in reads: tok = a.ds_read(op, rs("v", rb + ro, cnt), addr, off)
            frag_tok[gi] = tok

        def max_items(t, first):
            regs = [V_S + 16 * t + k for k in range(16)]; its = []
            if first:
                its.append(lambda: a.v("v_max3_f32", vr(V_M), vr(regs[0]), vr(regs[1]), vr(regs[2])))
                rest = regs[3:]
                for k in range(0, 12, 2): its.append(lambda k=k: a.v("v_max3_f32", vr(V_M), vr(V_M), vr(rest[k]), vr(rest[k + 1])))
                its.append(lambda: a.v("v_max_f32", vr(V_M), vr(V_M), vr(rest[12])))
            else:
                for k in range(0, 16, 2): its.append(lambda k=k: a.v("v_max3_f32", vr(V_M), vr(V_M), vr(regs[k]), vr(regs[k + 1])))
            return its
        def xhalf(reg, op):
            x0, x1 = vr(V_T), vr(V_T + 1)
            a.v("v_mov_b32", x0, vr(reg)); a.v("v_mov_b32", x1, vr(reg))
            a.v("v_permlane32_swap_b32", x0, x1); a.v(op, vr(reg), x0, x1)
        def scr_addr(dst, partner, buf):
            a.v("v_lshrrev_b32", dst, 2, vr(V_L16))
            a.s("s_lshl_b32", T2, sr(S_W), 8)
            if partner: a.s("s_xor_b32", T2, T2, 512)
            a.s("s_add_u32", T2, T2, buf.addr)
            a.v("v_add_u32", dst, T2, dst)
        def m_send(h):
            def f():
                xhalf(V_M, "v_max_f32"); scr_addr(vr(V_T + 2), False, X[f"m{h}"])
                a.ds_write("ds_write_b32", vr(V_T + 2), vr(V_M)); a.wait_lds_all()
            return f
        def m_recv(h):
            def f():
                scr_addr(vr(V_T + 2), True, X[f"m{h}"])
                tok = a.ds_read("ds_read_b32", vr(V_T + 3), vr(V_T + 2)); a.wait_lds(tok)
                a.v("v_max_f32", vr(V_M), vr(V_M), vr(V_T + 3)); a.v("v_mul_f32", vr(V_MC), sr(S_C), vr(V_M)); a.v("v_mov_b32", vr(V_L), 0)
                if opt.get("pks"): a.v("v_mov_b32", vr(V_L + 1), 0)
            return f
        def p_items(t):
            base = V_S + 16 * t; fs = []; gs = []
            for k in range(0, 16, 2):
                r0 = base + k
                def f(r0=r0):
                    if opt.get("pks"):
                        a.add(I(f"v_pk_fma_f32 v[{r0}:{r0+1}], v[{r0}:{r0+1}], s[{S_C}:{S_C+1}], v[{V_M}:{V_M+1}] op_sel:[0,0,1] op_sel_hi:[1,0,1] neg_lo:[0,0,1] neg_hi:[0,0,1]",
                                "valu", R("v", r0, 2) + R("v", V_M, 2) + [("s", S_C)], R("v", r0, 2)))
                    else:
                        a.v("v_fma_f32", vr(r0), vr(r0), sr(S_C), f"-v{V_MC}"); a.v("v_fma_f32", vr(r0 + 1), vr(r0 + 1), sr(S_C), f"-v{V_MC}")
                    a.v("v_exp_f32", vr(r0), vr(r0)); a.v("v_exp_f32", vr(r0 + 1), vr(r0 + 1))
                def g_(r0=r0, k=k):
                    if opt.get("pks"):
                        a.add(I(f"v_pk_add_f32 v[{V_L}:{V_L+1}], v[{V_L}:{V_L+1}], v[{r0}:{r0+1}]", "valu", R("v", V_L, 2) + R("v", r0, 2), R("v", V_L, 2)))
                    else:
                        a.v("v_add_f32", vr(V_L), vr(V_L), vr(r0)); a.v("v_add_f32", vr(V_L), vr(V_L), vr(r0 + 1))
                    a.v("v_cvt_pk_bf16_f32", vr(base + k // 2), vr(r0), vr(r0 + 1))
                fs.append(f); gs.append(g_)
            out = []
            for k in range(8):
                out.append(fs[k])
                if k >= 1: out.append(gs[k - 1])
            out.append(gs[7]); return out
        def l_send(h):
            def f():
                if opt.get("pks"): a.v("v_add_f32", vr(V_L), vr(V_L), vr(V_L + 1))
                xhalf(V_L, "v_add_f32"); scr_addr(vr(V_T + 2), False, X[f"l{h}"])
                a.ds_write("ds_write_b32", vr(V_T + 2), vr(V_L)); a.wait_lds_all()
            return f
        def q_write_items(buf):
            its = []
            for T in range(3):
                for u in range(2):
                    def f(T=T, u=u):
                        t = [vr(V_T + k) for k in range(8)]; q = [vr(V_T + 8 + k) for k in range(4)]
                        for k in range(8): a.v("v_accvgpr_read_b32", t[k], f"a{A_QACC + 16*T + 8*u + k}")
                        for k in range(4): a.v("v_cvt_pk_bf16_f32", q[k], t[2 * k], t[2 * k + 1])
                        a.v("v_permlane32_swap_b32", q[0], q[2]); a.v("v_permlane32_swap_b32", q[1], q[3])
                        a.v("v_add_u32", t[0], buf.addr, vr(V_XA))
                        a.ds_write("ds_write_b128", t[0], rs("v", V_T + 8, 4), (2 * T + u) * 1024)
                    its.append(f)
            its.append(lambda: a.wait_lds_all()); return its
        def frags_read_items(buf, dkind, dbase):
            its = [lambda: a.v("v_add_u32", vr(V_T + 12), buf.addr, vr(V_XA + 1))]
            for s_ in range(12): its.append(lambda s_=s_: a.ds_read("ds_read_b128", rs(dkind, dbase + 4 * s_, 4), vr(V_T + 12), s_ * 1024))
            its.append(lambda: a.wait_lds_all()); return its
        def o_send_items(buf, h):
            its = [lambda: a.v("v_add_u32", vr(V_T + 12), buf.addr, vr(V_XA + 2))]
            for k in range(12): its.append(lambda k=k: a.ds_write("ds_write_b128", vr(V_T + 12), rs("a", A_O(h) + 48 + 4 * k, 4), k * 1024))
            its.append(lambda: a.wait_lds_all()); return its
        def o_comb_items(bufa, lbuf, RB, h):
            its = []; rtok = {}
            def f0():
                a.v("v_add_u32", vr(V_T + 12), bufa.addr, vr(V_XP))
                scr_addr(vr(V_T + 13), True, lbuf)
                tl = a.ds_read("ds_read_b32", vr(V_T + 14), vr(V_T + 13))
                for k in range(12): rtok[k] = a.ds_read("ds_read_b128", rs("v", RB + 4 * k, 4), vr(V_T + 12), k * 1024)
                if opt.get("xpipe") and h == 1: a.wait_lds(tl)
                else: a.wait_lds_all()
                a.v("v_add_f32", vr(V_RINV), vr(V_L), vr(V_T + 14)); a.v("v_rcp_f32", vr(V_RINV), vr(V_RINV))
            its.append(f0)
            for fr in range(6):
                def f(fr=fr):
                    t = [vr(V_T + k) for k in range(8)]; q = [vr(V_T + 8 + k) for k in range(4)]
                    for k in range(8): a.v("v_accvgpr_read_b32", t[k], f"a{A_O(h) + 8*fr + k}")
                    if opt.get("xpipe") and h == 1: a.wait_lds(rtok[2 * fr + 1])
                    if opt["pk"]:
                        for k in range(0, 8, 2):
                            a.add(I(f"v_pk_add_f32 v[{V_T+k}:{V_T+k+1}], v[{V_T+k}:{V_T+k+1}], v[{RB+8*fr+k}:{RB+8*fr+k+1}]", "valu", R("v", V_T + k, 2) + R("v", RB + 8 * fr + k, 2), R("v", V_T + k, 2)))
                        for k in range(0, 8, 2):
                            a.add(I(f"v_pk_mul_f32 v[{V_T+k}:{V_T+k+1}], v[{V_T+k}:{V_T+k+1}], v[{V_L}:{V_L+1}] op_sel:[0,1] op_sel_hi:[1,1]", "valu", R("v", V_T + k, 2) + R("v", V_L, 2), R("v", V_T + k, 2)))
                    else:
                        for k in range(8): a.v("v_add_f32", t[k], t[k], vr(RB + 8 * fr + k))
                        for k in range(8): a.v("v_mul_f32", t[k], t[k], vr(V_RINV))
                    for k in range(4): a.v("v_cvt_pk_bf16_f32", q[k], t[2 * k], t[2 * k + 1])
                    a.ds_write("ds_write_b128", vr(V_T + 12), rs("v", V_T + 8, 4), fr * 1024)
                its.append(f)
            its.append(lambda: a.wait_lds_all()); return its
        def ofrags_read_items(buf, dkind, dbase):
            its = [lambda: a.v("v_add_u32", vr(V_T + 12), buf.addr, vr(V_XA + 1))]
            for s_ in range(12):
                off = (24576 + s_ * 1024) if s_ < 6 else (s_ - 6) * 1024
                its.append(lambda s_=s_, off=off: a.ds_read("ds_read_b128", rs(dkind, dbase + 4 * s_, 4), vr(V_T + 12), off))
            its.append(lambda: a.wait_lds_all()); return its
        ptok = {}
        PKB = V_S
        def pconv_items(t):
            tb = V_S + 80 + 16 * (t & 1)
            def f1():
                for k in range(16): a.v("v_accvgpr_read_b32", vr(tb + k), f"a{A_OUT + 16*t + k}")
            def f2():
                for k in range(8): a.v("v_cvt_pk_bf16_f32", vr(PKB + 8 * t + k), vr(tb + 2 * k), vr(tb + 2 * k + 1))
            return [f1, f2]
        def pst_item(t):
            def f3():
                rot_tile(t, T2, True); a.s("s_lshl_b32", T2, T2, 13); a.s("s_add_u32", T2, T2, sr(S_PB))
                a.bstore("buffer_store_dwordx4", rs("v", PKB + 8 * t, 4), vr(V_L16), srd(S_P), T2, 0, opt.get("pfl", "sc1"))
                ptok[t] = a.bstore("buffer_store_dwordx4", rs("v", PKB + 8 * t + 4, 4), vr(V_L16), srd(S_P), T2, 1024, opt.get("pfl", "sc1"))
                if opt["tail4"]:
                    CKR = 240 + 2 * (t & 3)
                    a.s("s_mul_i32", T2, sr(S_J), 20480); a.s("s_lshl_b32", T3, sr(S_W), 9); a.s("s_add_u32", T2, T2, T3)
                    a.s("s_add_u32", T2, T2, t * 2048)
                    for hh in range(2):
                        d = PKB + 8 * t + 4 * hh; c = vr(CKR + hh)
                        a.v("v_lshl_add_u32", c, vr(d + 1), 1, vr(d)); a.v("v_lshl_add_u32", c, vr(d + 2), 2, c)
                        a.v("v_lshl_add_u32", c, vr(d + 3), 3, c); a.v("v_sub_u32", c, sr(S_NONCE), c)
                        a.bstore("buffer_store_dword", c, vr(V_L4), srd(S_F), T2, 256 * hh, "sc1")
            return f3
        side = {i: [] for i in range(NS + 1)}
        def ix(n): return idx[n]
        for i, st in enumerate(seq):
            if st.kind == "QK":
                if not (st.h == 0 and st.t == 7): side[i + 1] += max_items(st.t, st.t == 0)
                if st.t == 7 and st.h == 1: side[i + 1] += [m_send(1)]
            if st.kind == "PV" and st.t < 7:
                side[i] += p_items(st.t + 1)
                if st.t == 6: side[i] += [l_send(st.h)]
            if st.kind == "Op" and st.h == 1: side[i + 1] += pconv_items(st.t)
        side[ix("Qp1.9") + 1] = q_write_items(X["xQ1"]) + side[ix("Qp1.9") + 1]
        side[ix("Qp1.9") + 2] = frags_read_items(X["xQ1"], "v", V_Q) + side[ix("Qp1.9") + 2]
        side[ix("Op1.0")] = [nonce_load] + side[ix("Op1.0")]
        if opt["tail4"]: side[ix("Op1.1")] = [lambda: a.v("v_lshrrev_b32", vr(V_L4), 2, vr(V_L16))] + side[ix("Op1.1")]
        side[ix("Op1.3")] = [nonce_check] + side[ix("Op1.3")]
        if opt["tail4"]:
            side[ix("Op1.6")] = [tail4_setup] + side[ix("Op1.6")]; side[ix("Op1.7")] = [tail4_setup2] + side[ix("Op1.7")]
            if opt.get("hint_at"): side[ix(opt["hint_at"])] = [hint_store] + side[ix(opt["hint_at"])]
        for stp, blks in opt["st_sched"].items():
            k = NS if stp == "end" else ix(stp)
            side[k] = side[k] + [pst_item(t) for t in blks]
        if opt["wq_pf"] is not None: side[opt["wq_pf"]] = [wpf_items()[0]] + side[opt["wq_pf"]]
        if opt["wo_pf"] is not None: side[opt["wo_pf"]] = [wpf_items()[1]] + side[opt["wo_pf"]]
        side[ix("QK1.0")] = o_send_items(X["xO0a"], 0) + side[ix("QK1.0")]
        side[ix("QK1.1")] += o_comb_items(X["xO0a"], X["l0"], V_S + 64, 0)
        side[ix("QK1.2")] += ofrags_read_items(X["xO0a"], "a", A_OF)

        xearly = {}
        for t_ in range(10):
            bx = seq[t_].bufs[1]
            if bx.need != t_: xearly.setdefault(bx.need, []).append(bx)
        def xearly_items(bx):
            last = [None]
            def f0():
                a.v("v_add_u32", vr(V_T), bx.addr, vr(V_BX))
                for k in (1, 2, 3): a.v("v_xor_b32", vr(V_T + k), 32 * k, vr(V_T))
            its = [f0]
            for ks in range(4):
                def f(ks=ks): last[0] = a.ds_read("ds_read_b128", rs("a", A_X + 4 * (bx.t * 4 + ks), 4), vr(V_T + ks), 0)
                its.append(f)
            return its, last
        for s_, lst in xearly.items():
            its = []
            for bx in lst:
                it, last = xearly_items(bx); its += it
            its += [lambda: None] * max(4, len(its) // 2)
            its.append(lambda last=last: a.wait_lds(last[0]))
            side[s_] = its + side[s_]
        landed = set(); prefetched = {}
        def wait_tiles(i):
            tk = [toks[b.name] for b in seq[i].bufs if mine(b)] + [toks[b.name] for b in xearly.get(i, [])]
            if tk: a.wait_vm(max(tk))
        def can_ahead(i, j): return all((b.flush <= i - 1 if b.reg else b.issue <= i - opt.get("ahead_min", 2)) for b in seq[j].bufs + xearly.get(j, []))
        for st_b in seq:
            for b in st_b.bufs:
                if not b.reg: continue
                def fl0(b=b):
                    a.wait_vm(toks[b.name])
                    a.v("v_add_u32", vr(V_DUM), b.addr, vr(V_L16)); a.v("v_add_u32", vr(V_DUM), sr(S_LA), vr(V_DUM))
                its = [fl0]; lastw = [None]
                for m in range(6):
                    def fw(m=m, b=b, lastw=lastw): lastw[0] = a.ds_write("ds_write_b128", vr(V_DUM), rs(b.reg[0], b.reg[1] + 4 * m, 4), m * 1024)
                    its.append(fw)
                its.append(lambda lastw=lastw: a.wait_lds(lastw[0]))
                side[b.flush] = side[b.flush] + its
        for i, st in enumerate(seq):
            a.comment(f"---- step {i}: {st}")
            st_(repr(st))
            if st.nm == 0:
                def pdma():
                    for b in issue_at.get(i, []):
                        for f in dma_items(b): f()
                if st.kind == "X1":
                    a.barrier()
                    for f in q_write_items(X["xQ0"]): f()
                    a.barrier()
                    for f in frags_read_items(X["xQ0"], "v", V_Q)[:-1]: f()
                    pdma(); a.wait_lds_all()
                elif st.kind == "M1":
                    a.barrier()
                    for f in max_items(7, False): f()
                    m_send(0)(); pdma()
                elif st.kind == "M2":
                    a.barrier(); m_recv(st.h)(); pdma()
                    if st.h == 1:
                        for k in range(48): a.v("v_accvgpr_read_b32", vr(V_Q + k), f"a{A_OF + k}")
                    for f in p_items(0): f()
                elif st.kind == "X3":
                    a.barrier()
                    for f in o_send_items(X["xO1a"], 1): f()
                    pdma()
                elif st.kind == "X4":
                    a.barrier(); pdma()
                    for f in o_comb_items(X["xO1a"], X["l1"], V_S + 64, 1): f()
                continue
            if i not in landed: wait_tiles(i); landed.add(i)
            j = i + 1 if (i + 1 < NS and seq[i + 1].nm > 0) else None
            ahead = j is not None and can_ahead(i, j)
            if ahead: wait_tiles(j)
            a.barrier()
            if ahead: landed.add(j)
            oft = {}
            if repr(st) == "Op1.0":
                if opt.get("xpipe"):
                    a.v("v_add_u32", vr(V_T + 12), X["xO1a"].addr, vr(V_XA + 1))
                    for s_ in range(12):
                        off = (24576 + s_ * 1024) if s_ < 6 else (s_ - 6) * 1024
                        oft[s_] = a.ds_read("ds_read_b128", rs("v", V_Q + 4 * s_, 4), vr(V_T + 12), off)
                else:
                    for f in ofrags_read_items(X["xO1a"], "v", V_Q): f()
            n0 = prefetched.get(i, 0)
            if n0 == 0:
                for f in addr_items(i): f()
                for n in range(min(PF, st.nm)): issue_frag(i, n)
                n0 = min(PF, st.nm)
            dmw = []; dmk = []
            for b in issue_at.get(i, []):
                if opt["kv_late"] and b.kind in ("k", "v"): dmk += dma_items(b)
                else: dmw += dma_items(b)
            sd = list(side[i])
            if dmk and dmw and False: pass
            queue = dmw + sd + dmk if opt["kv_late"] else dmw + sd
            ndm_front = len(dmw) if opt["front"] else 0
            if opt.get("op1_spread") and st.kind == "Op" and st.h == 1: ndm_front = 0
            if not opt["front"] and not (st.kind == "Op" and st.h == 1):
                dm = list(dmw); queue = []; s2 = list(sd)
                ratio = max(1, round(len(s2) / max(1, len(dm)))) if dm else 1
                while dm or s2:
                    if dm: queue.append(dm.pop(0))
                    for _ in range(ratio):
                        if s2: queue.append(s2.pop(0))
                queue += dmk
            nq = len(queue); done = 0; issued = n0
            for n in range(st.nm):
                if issued < st.nm: issue_frag(i, issued); issued += 1
                elif ahead:
                    k = issued - st.nm
                    if k == 0 and prefetched.get(j, 0) == 0:
                        for f in addr_items(j): f()
                    if k < min(PF, seq[j].nm): issue_frag(j, k); prefetched[j] = k + 1; issued += 1
                gi = gstart[i] + n
                a.wait_lds(max(frag_tok[gi], oft.get(n, 0)))
                reads, xb, D, B, C = frag_spec(i, n)
                a.mfma(D, rs("v", V_A + 4 * (gi % NRING), 4), B, C, shape="32x32x16")
                target = math.ceil(nq * (n + 1) / st.nm)
                if ndm_front: target = max(target, min(ndm_front, math.ceil(ndm_front * (n + 1) / 7)))
                while done < min(target, nq): queue[done](); done += 1
            assert done == nq
        ptok_ref[0] = ptok
        tail(side[NS], st_)

    VN = 254
    VFA = 250
    VFO = 249
    LB = 128; ACC = 240
    vt = [vr(V_T + k) for k in range(8)]
    tokA = [None]
    def nonce_load():
        a.v("v_mov_b32", vr(VFO), 0)
        tokA[0] = a.bload("buffer_load_dwordx2", rs("v", VN, 2), vr(VFO), srd(S_DBG), 0, 0, "sc1")
    def flag_store(stage):
        a.s("s_lshl_b32", T0, sr(S_J), 3); a.s("s_lshl_b32", T1, sr(S_W), 7); a.s("s_add_u32", T0, T0, T1); a.v("v_mov_b32", vt[0], T0)
        a.bstore("buffer_store_dwordx2", rs("v", VN, 2), vt[0], srd(S_F), 0, stage * 512, "sc1")
    def nonce_check():
        a.wait_vm(tokA[0])
        a.v("v_readfirstlane_b32", T0, vr(VN)); a.nop(2)
        a.s("s_cmp_lg_u32", T0, 0); a.raw("s_cbranch_scc1 L_nok", "branch")
        a.s("s_mov_b32", T1, 0); a.v("v_mov_b32", vt[0], 0)
        a.label("L_nonce")
        a.s("s_add_u32", T1, T1, 1); a.s("s_cmp_gt_u32", T1, 100000); a.raw("s_cbranch_scc1 L_nok", "branch")
        a.raw(f"buffer_load_dwordx2 v[{VN}:{VN+1}], {vt[0]}, {srd(S_DBG)}, 0 offen sc1", "vmem_load")
        a.raw("s_waitcnt vmcnt(0)", "wait")
        a.v("v_readfirstlane_b32", T0, vr(VN)); a.nop(2)
        a.s("s_cmp_eq_u32", T0, 0); a.raw("s_cbranch_scc1 L_nonce", "branch")
        a.label("L_nok")
        a.s("s_mov_b32", sr(S_NONCE), T0)
    def flags_ok(regs, fail_label):
        a.add(I(f"v_cmp_eq_u32 vcc, v{regs}, v{VN}", "valu", [("v", regs), ("v", VN)], [("vcc", 0)]))
        a.add(I(f"v_cmp_eq_u32 s[{S_SAVE}:{S_SAVE+1}], v{regs+1}, v{VN+1}", "valu", [("v", regs + 1)], [("s", S_SAVE), ("s", S_SAVE + 1)]))
        a.nop(2)
        a.s("s_and_b64", f"s[{S_SAVE}:{S_SAVE+1}]", f"s[{S_SAVE}:{S_SAVE+1}]", "vcc")
        a.raw(f"s_cmp_eq_u64 s[{S_SAVE}:{S_SAVE+1}], -1", "salu")
        a.raw(f"s_cbranch_scc0 {fail_label}", "branch")
    def poll(stage, tag):
        a.s("s_bfe_u32", T0, sr(S_CH), "0x20001"); a.s("s_lshl_b32", T0, T0, 7); a.s("s_add_u32", sr(S_CP), T0, stage * 512)
        a.v("v_lshrrev_b32", vr(VFO), 1, vr(V_L16)); a.v("v_and_b32", vr(VFO), 127, vr(VFO))
        a.s("s_mov_b32", T1, 0)
        a.label(f"L_poll{tag}")
        a.s("s_add_u32", T1, T1, 1); a.s("s_cmp_gt_u32", T1, 200000); a.raw(f"s_cbranch_scc1 L_pok{tag}", "branch")
        a.raw(f"buffer_load_dwordx2 v[{VFA}:{VFA+1}], v{VFO}, {srd(S_F)}, s{S_CP} offen sc1", "vmem_load")
        a.raw("s_waitcnt vmcnt(0)", "wait")
        flags_ok(VFA, f"L_poll{tag}")
        a.label(f"L_pok{tag}")
    S_CH = S_R8
    def chunk_addr(cidx_s, pos0):
        a.s("s_lshr_b32", T2, cidx_s, 3); a.s("s_add_u32", T2, T2, sr(S_ROTO))
        if pos0: a.s("s_add_u32", T2, T2, pos0)
        a.s("s_cmp_ge_u32", T2, 10); a.s("s_cselect_b32", T3, 10, 0); a.s("s_sub_u32", T2, T2, T3)
        a.s("s_lshl_b32", T2, T2, 3); a.s("s_and_b32", T3, cidx_s, 7); a.s("s_add_u32", sr(S_CH), T2, T3)
        a.s("s_lshl_b32", T2, sr(S_CH), 10)
    def red_loads(LB=LB):
        for p in range(16):
            a.s("s_add_u32", T3, T2, p * 81920)
            a.raw(f"buffer_load_dwordx4 v[{LB+4*p}:{LB+4*p+3}], v{V_L16}, {srd(S_P)}, {T3} offen sc1", "vmem_load")
    def red_sum_store(LB=LB, extra=0, S_CH=S_CH):
        a.s("s_mov_b32", sr(S_SAVE), "0x3f80"); a.s("s_mov_b32", sr(S_SAVE + 1), "0x3f800000")
        for p in range(16):
            a.raw(f"s_waitcnt vmcnt({15-p+extra})", "wait")
            for k in range(4):
                lo, hi = vr(ACC + 2 * k), vr(ACC + 2 * k + 1); r = vr(LB + 4 * p + k)
                if p == 0: a.v("v_lshlrev_b32", lo, 16, r); a.v("v_and_b32", hi, "0xffff0000", r)
                else: a.v("v_dot2c_f32_bf16", lo, sr(S_SAVE), r); a.v("v_dot2c_f32_bf16", hi, sr(S_SAVE + 1), r)
        cS = sr(S_CH)
        a.s("s_lshr_b32", T2, cS, 3); a.s("s_lshl_b32", T2, T2, 7)
        a.s("s_bfe_u32", T3, cS, "0x10002"); a.s("s_lshl_b32", T3, T3, 6); a.s("s_add_u32", T2, T2, T3)
        a.s("s_and_b32", T3, cS, 1); a.s("s_lshl_b32", T3, T3, 5); a.s("s_add_u32", T2, T2, T3)
        a.s("s_bfe_u32", T3, cS, "0x10001"); a.s("s_mul_i32", T3, T3, 32 * 1280); a.s("s_add_u32", T2, T2, T3)
        PK = V_T + 8
        for k in range(4): a.v("v_cvt_pk_bf16_f32", vr(PK + k), vr(ACC + 2 * k), vr(ACC + 2 * k + 1))
        a.v("v_permlane32_swap_b32", vr(PK), vr(PK + 2)); a.v("v_permlane32_swap_b32", vr(PK + 1), vr(PK + 3))
        a.v("v_and_b32", vt[4], 31, "v0"); a.v("v_mul_u32_u24", vt[4], 1280, vt[4])
        a.v("v_bfe_u32", vt[5], "v0", 5, 1); a.v("v_lshlrev_b32", vt[5], 4, vt[5]); a.v("v_add_u32", vt[4], vt[4], vt[5])
        a.add(I(f"buffer_store_dwordx4 v[{PK}:{PK+3}], {vt[4]}, {srd(S_OUT)}, {T2} offen {opt.get('ofl', '')}".rstrip(), "vmem_store", R("v", PK, 4) + [("v", V_T + 4)], []))
    S_GW = S_SOFF
    AID = 44; TT = [vr(32), vr(33), vr(34), vr(35)]; DD = 240
    TDA = 224; TCA = 228; TDB = 232; TCB = 236
    MASK, SJ, SD, SC, IT = 92, 93, 96, 97, 98
    def aid_build2():
        m, hf, e, val = vr(36), vr(37), vr(38), vr(39)
        a.v("v_and_b32", m, 31, "v0"); a.v("v_bfe_u32", hf, "v0", 5, 1)
        a.v("v_lshrrev_b32", e, 3, m)
        a.v("v_and_b32", val, 1, m); a.v("v_lshlrev_b32", val, 4, val)
        a.v("v_mov_b32", vr(AID), "0x3f80"); a.v("v_lshlrev_b32", val, val, vr(AID))
        a.add(I(f"v_cmp_eq_u32 vcc, {e}, {hf}", "valu", [("v", 38), ("v", 37)], [("vcc", 0)]))
        a.add(I(f"v_cndmask_b32 {val}, 0, {val}, vcc", "valu", [("v", 39), ("vcc", 0)], [("v", 39)]))
        a.v("v_bfe_u32", e, m, 1, 2)
        for k in range(4):
            a.add(I(f"v_cmp_eq_u32 vcc, {k}, {e}", "valu", [("v", 38)], [("vcc", 0)]))
            a.add(I(f"v_cndmask_b32 v{AID+k}, 0, {val}, vcc", "valu", [("v", 39), ("vcc", 0)], [("v", AID + k)]))
    def chunk_setup(c_s, CH, DO, CK):
        a.s("s_lshr_b32", T2, c_s, 3)
        a.s("s_lshl_b32", sr(CK), c_s, 8)
        a.s("s_add_u32", T2, T2, sr(S_ROTO))
        a.s("s_cmp_ge_u32", T2, 10); a.s("s_cselect_b32", T3, 10, 0); a.s("s_sub_u32", T2, T2, T3)
        a.s("s_lshl_b32", T2, T2, 3); a.s("s_and_b32", T3, c_s, 7); a.s("s_add_u32", sr(CH), T2, T3)
        a.s("s_lshl_b32", sr(DO), sr(CH), 10)
    def chunk_loads(DB, CB, DO, CK):
        for p in range(16):
            if p: a.s("s_add_u32", T2, sr(DO), p * 81920); a.s("s_add_u32", T3, sr(CK), p * 20480)
            so, sc = (T2, T3) if p else (sr(DO), sr(CK))
            a.raw(f"buffer_load_dwordx4 v[{DB+4*p}:{DB+4*p+3}], v{V_L16}, {srd(S_P)}, {so} offen sc1", "vmem_load")
            a.raw(f"buffer_load_dword v{CB+p}, v{V_L4}, {srd(S_F)}, {sc} offen sc1", "vmem_load")
    def verify(d, c, t):
        a.raw(f"v_lshl_add_u32 {t}, v{d+1}, 1, v{c}", "valu"); a.raw(f"v_lshl_add_u32 {t}, v{d+2}, 2, {t}", "valu")
        a.raw(f"v_lshl_add_u32 {t}, v{d+3}, 3, {t}", "valu"); a.raw(f"v_add_u32 {t}, {t}, v{d}", "valu")
        a.raw(f"v_cmp_ne_u32 vcc, s{S_NONCE}, {t}", "valu")
    def acc(d): a.raw(f"v_mfma_f32_32x32x16_bf16 v[{DD}:{DD+15}], v[{AID}:{AID+3}], v[{d}:{d+3}], v[{DD}:{DD+15}]", "other")
    def chunk_process(tag, DB, CB, CH, DO, CK, extra):
        for k in range(16): a.raw(f"v_mov_b32 v{DD+k}, 0", "valu")
        a.raw(f"s_mov_b32 s{MASK}, 0", "salu")
        for p in range(16):
            a.raw(f"s_waitcnt vmcnt({2*(15-p)+extra})", "wait")
            verify(DB + 4 * p, CB + p, TT[p & 3])
            a.raw(f"s_cbranch_vccz L_ok{tag}{p}", "branch")
            a.raw(f"s_bitset1_b32 s{MASK}, {p}", "salu"); a.raw(f"s_branch L_nx{tag}{p}", "branch")
            a.label(f"L_ok{tag}{p}"); acc(DB + 4 * p); a.label(f"L_nx{tag}{p}")
        a.label(f"L_pend{tag}")
        a.raw(f"s_cmp_eq_u32 s{MASK}, 0", "salu"); a.raw(f"s_cbranch_scc1 L_done{tag}", "branch")
        if opt.get("hint_at"):
            a.raw(f"s_bfe_u32 s{SC}, s{CH}, 0x20001", "salu"); a.raw(f"s_lshl_b32 s{SC}, s{SC}, 6", "salu")
            a.raw(f"s_add_u32 s{SC}, s{SC}, 327680", "salu")
            a.raw(f"s_mov_b32 s{IT}, 0", "salu")
            def hl(r): a.raw(f"buffer_load_dword v{r}, v38, {srd(S_F)}, s{SC} offen sc1", "vmem_load")
            def hc(r):
                a.raw("s_waitcnt vmcnt(1)", "wait")
                a.raw(f"v_cmp_eq_u32 vcc, s{S_NONCE}, v{r}", "valu"); a.raw("s_nop 1", "other")
                a.raw(f"s_and_b32 s{SD}, vcc_lo, s{MASK}", "salu"); a.raw(f"s_cbranch_scc1 L_hgot{tag}", "branch")
            hl(TCA)
            a.label(f"L_hp{tag}")
            hl(TCB); hc(TCA); hl(TCA); hc(TCB)
            a.raw(f"s_add_u32 s{IT}, s{IT}, 1", "salu"); a.raw(f"s_cmp_lt_u32 s{IT}, 50000", "salu")
            a.raw(f"s_cbranch_scc1 L_hp{tag}", "branch")
            a.raw(f"s_mov_b32 s{SD}, s{MASK}", "salu")
            a.label(f"L_hgot{tag}")
            a.raw(f"s_ff1_i32_b32 s{SJ}, s{SD}", "salu")
        else:
            a.raw(f"s_ff1_i32_b32 s{SJ}, s{MASK}", "salu")
        a.raw(f"s_bitset0_b32 s{MASK}, s{SJ}", "salu")
        a.raw(f"s_mul_i32 s{SD}, s{SJ}, 81920", "salu"); a.raw(f"s_add_u32 s{SD}, s{SD}, s{DO}", "salu")
        a.raw(f"s_mul_i32 s{SC}, s{SJ}, 20480", "salu"); a.raw(f"s_add_u32 s{SC}, s{SC}, s{CK}", "salu")
        a.raw(f"s_mov_b32 s{IT}, 0", "salu")
        def pl(TD, TC):
            a.raw(f"buffer_load_dwordx4 v[{TD}:{TD+3}], v{V_L16}, {srd(S_P)}, s{SD} offen sc1", "vmem_load")
            a.raw(f"buffer_load_dword v{TC}, v{V_L4}, {srd(S_F)}, s{SC} offen sc1", "vmem_load")
        pl(TDA, TCA)
        a.label(f"L_poll{tag}")
        pl(TDB, TCB); a.raw("s_waitcnt vmcnt(2)", "wait"); verify(TDA, TCA, TT[0])
        a.raw(f"s_cbranch_vccz L_gotA{tag}", "branch")
        pl(TDA, TCA); a.raw("s_waitcnt vmcnt(2)", "wait"); verify(TDB, TCB, TT[1])
        a.raw(f"s_cbranch_vccz L_gotB{tag}", "branch")
        a.raw(f"s_add_u32 s{IT}, s{IT}, 1", "salu"); a.raw(f"s_cmp_lt_u32 s{IT}, 50000", "salu")
        a.raw(f"s_cbranch_scc1 L_poll{tag}", "branch")
        a.raw(f"s_branch L_pend{tag}", "branch")
        a.label(f"L_gotA{tag}"); acc(TDA); a.raw(f"s_branch L_pend{tag}", "branch")
        a.label(f"L_gotB{tag}"); acc(TDB); a.raw(f"s_branch L_pend{tag}", "branch")
        a.label(f"L_done{tag}")
        cS = sr(CH)
        a.s("s_lshr_b32", T2, cS, 3); a.s("s_lshl_b32", T2, T2, 7)
        a.s("s_bfe_u32", T3, cS, "0x10002"); a.s("s_lshl_b32", T3, T3, 6); a.s("s_add_u32", T2, T2, T3)
        a.s("s_and_b32", T3, cS, 1); a.s("s_lshl_b32", T3, T3, 5); a.s("s_add_u32", T2, T2, T3)
        a.s("s_bfe_u32", T3, cS, "0x10001"); a.s("s_mul_i32", T3, T3, 32 * 1280); a.s("s_add_u32", T2, T2, T3)
        a.raw("s_nop 15", "other"); a.raw("s_nop 7", "other")
        PK = V_T + 8
        for k in range(4): a.raw(f"v_cvt_pk_bf16_f32 v{PK+k}, v{DD+2*k}, v{DD+2*k+1}", "valu")
        a.raw(f"buffer_store_dwordx4 v[{PK}:{PK+3}], v39, {srd(S_OUT)}, {T2} offen", "vmem_store")
        a.raw("s_nop 1", "other")
    CHX, DOX, CKX, CHY, DOY, CKY = 86, 87, 88, 89, 90, 91
    def tail4_setup():
        if opt.get("cmap", 1) == 0:
            a.s("s_mul_i32", T0, sr(S_J), 5); a.s("s_add_u32", T1, T0, sr(S_W)); a.s("s_add_u32", T0, T0, 4)
        else:
            a.s("s_lshl_b32", T1, sr(S_W), 4); a.s("s_add_u32", T1, T1, sr(S_J)); a.s("s_add_u32", T0, sr(S_J), 64)
        chunk_setup(T1, CHX, DOX, CKX); chunk_setup(T0, CHY, DOY, CKY)
    def tail4_setup2():
        aid_build2()
        a.v("v_and_b32", vr(36), 31, "v0"); a.v("v_mul_u32_u24", vr(36), 1280, vr(36))
        a.v("v_bfe_u32", vr(37), "v0", 5, 1); a.v("v_lshlrev_b32", vr(37), 4, vr(37))
        a.v("v_add_u32", vr(39), vr(36), vr(37))
        a.v("v_and_b32", vr(38), 15, "v0"); a.v("v_lshlrev_b32", vr(38), 2, vr(38))
    def hint_store():
        a.s("s_lshl_b32", T0, sr(S_J), 2); a.s("s_lshl_b32", T1, sr(S_W), 6); a.s("s_add_u32", T0, T0, T1); a.s("s_add_u32", T0, T0, 327680)
        a.v("v_mov_b32", vr(32), sr(S_NONCE)); a.v("v_mov_b32", vr(33), 0)
        a.bstore("buffer_store_dword", vr(32), vr(33), srd(S_F), T0, 0, "sc1")
    def tail4(last_side, st_):
        for f in last_side: f()
        st_("endop")
        if opt.get("gate"):
            a.raw(f"s_bfe_u32 s{SC}, s{CHX}, 0x20001", "salu"); a.raw(f"s_lshl_b32 s{SC}, s{SC}, 6", "salu")
            a.raw(f"s_add_u32 s{SC}, s{SC}, 327680", "salu"); a.raw(f"s_mov_b32 s{IT}, 0", "salu")
            def hl(r): a.raw(f"buffer_load_dword v{r}, v38, {srd(S_F)}, s{SC} offen sc1", "vmem_load")
            def hc(r):
                a.raw("s_waitcnt vmcnt(1)", "wait")
                a.raw(f"v_cmp_eq_u32 vcc, s{S_NONCE}, v{r}", "valu"); a.raw("s_nop 1", "other")
                a.raw(f"s_cmp_eq_u32 vcc_lo, -1", "salu"); a.raw(f"s_cbranch_scc1 L_gate", "branch")
            hl(TCA)
            a.label("L_gp")
            hl(TCB); hc(TCA); hl(TCA); hc(TCB)
            a.raw(f"s_add_u32 s{IT}, s{IT}, 1", "salu"); a.raw(f"s_cmp_lt_u32 s{IT}, 50000", "salu")
            a.raw("s_cbranch_scc1 L_gp", "branch")
            a.label("L_gate")
        a.s("s_and_b32", T0, sr(S_J), 3); a.s("s_cmp_eq_u32", T0, sr(S_W)); a.raw("s_cbranch_scc1 L_two", "branch")
        chunk_loads(128, 192, DOX, CKX)
        chunk_process("X1", 128, 192, CHX, DOX, CKX, 0)
        a.raw("s_branch L_fin", "branch")
        a.label("L_two")
        chunk_loads(128, 192, DOX, CKX); chunk_loads(56, 208, DOY, CKY)
        chunk_process("X2", 128, 192, CHX, DOX, CKX, 32)
        chunk_process("Y2", 56, 208, CHY, DOY, CKY, 0)
        a.label("L_fin")
        st_("red")
    def tail5(last_side, st_):
        for f in last_side: f()
        st_("endop")
        a.wait_vm(ptok_ref[0][5]); flag_store(0)
        st_("flagA")
        a.wait_vm(ptok_ref[0][9]); flag_store(1)
        st_("stored")
        a.s("s_cmp_ge_u32", sr(S_W), 2); a.raw("s_cbranch_scc1 L_tB", "branch")
        a.s("s_cmp_eq_u32", sr(S_W), 1); a.raw("s_cbranch_scc1 L_tA1", "branch")
        a.s("s_lshl_b32", T0, sr(S_J), 1); chunk_addr(T0, 0); a.s("s_mov_b32", sr(S_CO), T2)
        poll(0, "A2")
        a.s("s_mov_b32", T2, sr(S_CO)); red_loads(128)
        a.s("s_add_u32", T2, sr(S_CO), 1024); red_loads(56)
        red_sum_store(128, 16)
        a.s("s_add_u32", sr(S_CH), sr(S_CH), 1)
        red_sum_store(56, 1)
        a.raw("s_branch L_fin", "branch")
        a.label("L_tA1")
        a.s("s_add_u32", T0, sr(S_J), 32); chunk_addr(T0, 0); a.s("s_mov_b32", sr(S_CO), T2)
        poll(0, "A1")
        a.s("s_mov_b32", T2, sr(S_CO)); red_loads(); red_sum_store()
        a.raw("s_branch L_fin", "branch")
        a.label("L_tB")
        a.s("s_lshl_b32", T0, sr(S_J), 1); a.s("s_add_u32", T0, T0, sr(S_W)); a.s("s_add_u32", T0, T0, 46)
        chunk_addr(T0, 0); a.s("s_mov_b32", sr(S_CO), T2)
        poll(1, "B")
        a.s("s_mov_b32", T2, sr(S_CO)); red_loads(); red_sum_store()
        a.label("L_fin")
        st_("red")
    def tail(last_side, st_):
        if opt["tail4"]: return tail4(last_side, st_)
        if opt.get("tail5"): return tail5(last_side, st_)
        for f in last_side: f()
        st_("endop")
        a.s("s_lshl_b32", sr(S_GW), sr(S_J), 2); a.s("s_add_u32", sr(S_GW), sr(S_GW), sr(S_W))
        a.wait_vm(ptok_ref[0][4]); flag_store(0)
        st_("flagA")
        a.wait_vm(ptok_ref[0][9]); flag_store(1)
        st_("stored")
        a.s("s_cmp_ge_u32", sr(S_GW), 40); a.raw("s_cbranch_scc1 L_noA", "branch")
        chunk_addr(sr(S_GW), 0)
        a.s("s_mov_b32", sr(S_CO), T2)
        poll(0, "A")
        a.s("s_mov_b32", T2, sr(S_CO))
        red_loads(); red_sum_store()
        a.label("L_noA")
        st_("redA")
        a.s("s_cmp_lt_u32", sr(S_GW), 24); a.raw("s_cbranch_scc1 L_fin", "branch")
        a.s("s_sub_u32", T0, 63, sr(S_GW))
        chunk_addr(T0, 5)
        a.s("s_mov_b32", sr(S_CO), T2)
        poll(1, "B")
        st_("synced")
        a.s("s_mov_b32", T2, sr(S_CO))
        red_loads(); red_sum_store()
        a.label("L_fin")
    S_CO = 80
    ptok_ref = [None]
    program(0)
    if stamps:
        a.raw("s_waitcnt vmcnt(0)", "wait"); stamp("end")
        a.s("s_lshl_b32", T0, "s2", 2); a.s("s_add_u32", T0, T0, sr(S_W)); a.s("s_lshl_b32", T0, T0, 9)
        a.s("s_add_u32", sr(S_F), "s18", 0x4000000); a.s("s_addc_u32", sr(S_F + 1), "s19", 0); a.s("s_and_b32", sr(S_F + 1), sr(S_F + 1), "0xffff")
        a.s("s_mov_b32", sr(S_F + 2), 1024 * 512)
        a.v("v_and_b32", vt[0], 63, "v0"); a.v("v_lshlrev_b32", vt[0], 2, vt[0]); a.nop(4)
        a.raw(f"buffer_store_dword v{V_ST}, {vt[0]}, {srd(S_F)}, {T0} offen", "vmem_store")
        a.raw(f"buffer_store_dword v{V_ST+1}, {vt[0]}, {srd(S_F)}, {T0} offen offset:256", "vmem_store")
    a.label("L_end"); a.raw("s_endpgm", "other"); a.label("L_codeend")
    a.finalize()
    hdr = [f"; @launch grid=(256,1,1) block=(256,1,1) lds=163840", '.amdgcn_target "amdgcn-amd-amdhsa--gfx950"', ".text",
           f".set CPF_LINES, ((L_codeend-{KN})/128+32)/32", f".globl {KN}", ".p2align 8", f".type {KN},@function", f"{KN}:"]
    ftr = ['.section .rodata,"a"', ".p2align 6", f".amdhsa_kernel {KN}",
           "  .amdhsa_next_free_vgpr 512", "  .amdhsa_next_free_sgpr 100", "  .amdhsa_accum_offset 256",
           "  .amdhsa_group_segment_fixed_size 0", "  .amdhsa_kernarg_size 64", "  .amdhsa_user_sgpr_count 2",
           "  .amdhsa_user_sgpr_kernarg_segment_ptr 1", "  .amdhsa_system_sgpr_workgroup_id_x 1", ".end_amdhsa_kernel"]
    txt = "\n".join(l.strip() if not l.startswith(";") else l for l in a.text().splitlines() if not l.strip().startswith("; ----")) + "\n"
    open(name, "w").write("\n".join(hdr) + "\n" + txt + "\n".join(ftr) + "\n")
    print(name, "instrs:", len(a.ins), "steps:", NS, "stamps:", stamp_n[0])
    return stamp_names

if __name__ == "__main__":
    XO = ["x.0", "wq0.0", "x.1", "wq0.1"] + [f"x.{t}" for t in range(2, 10)]
    base = dict(xall=True, early={}, init_order=XO, ninit=4, nfirst=2, front=True, fixed={"k0.0": 6, "k0.1": 8}, PF=4)
    import variants11
    variants11.run(gen, base)
```

```python
def run(gen, base):
    b1 = dict(base, tail5=True, cpf_top=True, rot2=True)
    b2 = dict(b1, fixed={}, rpark=("k", "v"), vpark=True, pre_only=True, maxunits=36, sep_last=True, lead_kv=16, lead_w=5)
    def pre(n, s0, d): return {f"k0.{i}": s0 + d * i for i in range(n)}
    z3 = dict(b2, pre=pre(3, 2, 2), lead_w1=5, xpipe=True, op1_spread=True, kvrot=3)
    E1 = {"Op1.3": [0, 1], "Op1.4": [2, 3], "Op1.5": [4], "Op1.6": [5], "Op1.7": [6], "Op1.8": [7], "Op1.9": [8], "end": [9]}
    gen("d1.s", opt=dict(z3, st_sched=E1, flagA_at="Op1.9", ppoll=True))
    names = gen("d_st.s", stamps=True, opt=dict(z3, st_sched=E1, flagA_at="Op1.9", ppoll=True))
    open("d_steps.txt", "w").write("\n".join(names))
```

```python
import sys, math, struct
from asmlib import *

KN = "standalone__gqa_block_cached__near_ridge_kernel"
UNIT = 2048
NUNIT = 80
def f32bits(x): return struct.unpack("<I", struct.pack("<f", x))[0]

V_KV = 1; V_WQ = 7; V_E = 13; V_O = 14
V_BK = 15; V_BV = 16; V_BQ = 17; V_BX = 18; V_BO = 19
V_W = 20
V_M = 28; V_MC = 29; V_L = 30; V_RINV = 31
V_T = 32
V_L16 = 48
V_XA = 49
V_ST = 52
V_DUM = 54; V_XP = 55; V_L4 = 17
V_A = 56; NRING = 6
V_Q = 80
V_S = 128
A_OUT = 0; A_X = 0
A_QACC = 160; A_OF = 160
def A_O(h): return 0 if h == 0 else 160

S_K = 20; S_V = 24; S_WQ = 28; S_WO = 32; S_X = 36; S_P = 40; S_F = 44; S_OUT = 48; S_DBG = 52
S_B = 56; S_J = 57; S_W = 58; S_C = 60; S_SOFF = 61; S_T0 = 62; S_T1 = 63
S_NONCE = 64; S_PB = 66; S_SAVE = 68; S_TM = 70; S_T2 = 72; S_T3 = 73
S_RH128 = 74; S_PVB = 75; S_CP = 76; S_PVC = 81
S_ROT = 84; S_ROTO = 59; S_KVR = 67
S_LR = 82; S_LA = 83
S_QR = 85; S_QA = 86
S_OR = 87; S_OA = 88
S_XL = 89; S_XG = 90
S_R8 = 91
S_ST = 94
def srd(n): return f"s[{n}:{n+3}]"
def sr(n): return f"s{n}"
def vr(n): return f"v{n}"

class Step:
    def __init__(self, kind, h=0, t=0):
        self.kind = kind; self.h = h; self.t = t; self.bufs = []
        self.nm = 12 if kind in ("Qp", "QK", "PV", "Op") else 0
    def __repr__(self): return f"{self.kind}{self.h}.{self.t}"
class Buf:
    def __init__(self, name, units, need, kind=None, h=0, t=0):
        self.name = name; self.units = units; self.need = need; self.kind = kind; self.h = h; self.t = t
        self.issue = None; self.addr = None; self.tok = {}; self.mode = None
        self.reg = None; self.flush = None

DEF = dict(k0="K0 W0 K1 W1 K2 W2 K3 W3 K4 W4 K5 K6 W5 K7",
           v0="V0 W6 V1 W7 V2 W8 V3 W9 V4 V5 V6 V7",
           k1="K0 K1 K2 W0 K3 W1 K4 W2 K5 W3 K6 K7 W4",
           v1="V0 W5 V1 W6 V2 W7 V3 W8 V4 W9 V5 V6 V7",
           PF=5, rot=True, nt=True, cpf=True, wpf=False, maxlead=8, maxunits=24,
           early={"k0.0": "first", "k0.1": 3}, nfirst=2, ahead_min=2,
           st_sched={"Op1.5": [0, 1], "Op1.6": [2, 3], "Op1.7": [4, 5], "Op1.8": [6, 7], "Op1.9": [8], "end": [9]}, tail4=False, dma_pseudo=(), kv_late=False, xread=None, cpf_top=False, pk=True, tail3=True, xall=False, front=False, ninit=3, xpf=False, wq_pf=None, wo_pf=None, tail2=True)

def build_sequence(opt):
    seq = []
    def add(k, h=0, t=0): seq.append(Step(k, h, t))
    for t in range(10): add("Qp", 0, t)
    add("X1")
    def phase(txt, kh, wk, wh):
        for x in txt.split():
            if x[0] == "K": add("QK", kh, int(x[1:]))
            elif x[0] == "V": add("PV", kh, int(x[1:]))
            else: add(wk, wh, int(x[1:]))
    phase(opt["k0"], 0, "Qp", 1)
    add("M1", 0); add("M2", 0)
    phase(opt["v0"], 0, "Qp", 1)
    phase(opt["k1"], 1, "Op", 0)
    add("M2", 1)
    phase(opt["v1"], 1, "Op", 0)
    add("X3"); add("X4")
    for t in range(10): add("Op", 1, t)
    return seq

def plan(opt, verbose=False):
    seq = build_sequence(opt); NS = len(seq)
    idx = {repr(s): i for i, s in enumerate(seq)}
    occ = [[False] * NUNIT for _ in range(NS + 2)]
    def find(units, s0, s1, top=False):
        NP = NUNIT if units == 1 else NUNIT - 2
        rng = range(NP - units, -1, -1) if (top or units == 1) else range(0, NP - units + 1)
        if opt.get("aligned") and units % 12 == 0: rng = range(72 - units, -1, -12) if top else range(0, 72 - units + 1, 12)
        for base in rng:
            if all(not occ[s + 1][base + u] for s in range(s0, s1 + 1) for u in range(units)): return base
        return None
    def reserve(buf, s0, s1, top=False):
        base = find(buf.units, s0, s1, top)
        if base is None: return False
        for s in range(s0, s1 + 1):
            for u in range(buf.units): occ[s + 1][base + u] = True
        buf.addr = base * UNIT; buf.issue = s0
        return True
    X = {}
    def xbuf(name, units, s0, s1):
        b = Buf(name, units, s1); assert reserve(b, s0, s1), name; X[name] = b
    tiles = []
    for i, st in enumerate(seq):
        if st.kind == "Qp":
            b1 = Buf(f"wq{st.h}.{st.t}", 12, i, "wq", st.h, st.t); st.bufs = [b1]; tiles.append(b1)
            if st.h == 0:
                xr_ = (opt["xread"] or {}).get(st.t, i)
                b2 = Buf(f"x.{st.t}", 4, xr_, "x", 0, st.t); st.bufs.append(b2); tiles.append(b2)
        elif st.kind == "QK": b = Buf(f"k{st.h}.{st.t}", 12, i, "k", st.h, st.t); st.bufs = [b]; tiles.append(b)
        elif st.kind == "PV": b = Buf(f"v{st.h}.{st.t}", 12, i, "v", st.h, st.t); st.bufs = [b]; tiles.append(b)
        elif st.kind == "Op": b = Buf(f"wo{st.h}.{st.t}", 12, i, "wo", st.h, st.t); st.bufs = [b]; tiles.append(b)
    def compute_before(i, n):
        s = i
        while n > 0 and s >= 0:
            s -= 1
            if s >= 0 and seq[s].nm > 0: n -= 1
        return s
    i = idx["X10.0"]; xbuf("xQ0", 12, i, i)
    i = idx["Qp1.9"]; xbuf("xQ1", 12, i + 1, i + 2)
    i = idx["M10.0"]; xbuf("m0", 1, i, i + 1)
    i = idx["PV0.6"]; xbuf("l0", 1, i, idx["QK1.1"])
    i = idx["QK1.0"]; xbuf("xO0a", 24, i, i + 2)
    i = idx["QK1.7"]; xbuf("m1", 1, i + 1, idx["M21.0"])
    i = idx["PV1.6"]; xbuf("l1", 1, i, idx["X40.0"])
    i = idx["X30.0"]; xbuf("xO1a", 24, i, i + 2)
    byname = {b.name: b for b in tiles}
    early = opt["early"]
    for b in tiles: b.mode = "a"
    for n, when in early.items():
        b = byname[n]; s0 = -1 if when == "first" else when
        assert reserve(b, s0, b.need, top=True), n
    last = -1; per_step = {}; lastc = {False: -1, True: max([-1] + list(opt.get("pre", {}).values()))}
    nfirst = opt["nfirst"]
    fixed = opt.get("fixed", {})
    if opt["xall"]:
        for b in tiles:
            if b.kind == "x":
                if opt.get("aligned"):
                    base = 72 if b.t == 0 else 72 - 4 * b.t
                    for s_ in range(-1, b.need + 1):
                        for u in range(4):
                            assert not occ[s_ + 1][base + u]; occ[s_ + 1][base + u] = True
                    b.addr = base * UNIT; b.issue = (opt.get("xissue") or {}).get(b.t, -1)
                else: assert reserve(b, -1, b.need, top=True), b.name
    rslots = []
    if opt.get("rpark"):
        rslots = [("a", 208, idx["PV1.0"] - 1), ("a", 232, idx["PV1.0"] - 1)]
        if opt.get("vpark"):
            rslots = [("v", 128 + 24 * k, idx[f"QK0.{(24 * k) // 16}"] - 1) for k in range(5)] + rslots
    rocc = [[False] * (NS + 2) for _ in rslots]
    def try_park(b, s):
        if b.kind not in opt.get("rpark", ()): return False
        for back in opt.get("rback", (2, 1)):
            f = compute_before(b.need, back)
            if f < s + opt.get("rmin", 2) or f < 0: continue
            for k, (kind, base, lim) in enumerate(rslots):
                if f > lim or any(rocc[k][t + 1] for t in range(s, f + 1)): continue
                if find(b.units, f, b.need) is None: continue
                reserve(b, f, b.need)
                for t in range(s, f + 1): rocc[k][t + 1] = True
                b.issue = s; b.reg = (kind, base); b.flush = f
                return True
        return False
    for n, s0 in opt.get("pre", {}).items():
        assert try_park(byname[n], s0), n
        per_step[s0] = per_step.get(s0, 0) + 12
    for b in tiles:
        if b.name in early or b.addr is not None: continue
        iskv = b.kind in ("k", "v")
        if opt.get("sep_last"):
            lw = opt.get("lead_w1", opt["lead_w"]) if (b.kind == "wo" and b.h == 1) else opt["lead_w"]
            s = max(lastc[iskv], b.need - (opt["lead_kv"] if iskv else lw), -1)
        else: s = max(last, b.need - opt["maxlead"], -1)
        if b.kind in ("wq", "x") and b.h == 0 and b.t < nfirst: s = -1
        else: s = max(s, 0)
        if b.name in fixed: s = max(s, fixed[b.name])
        while s < b.need:
            ok = (s < 0 or seq[s].nm > 0 or seq[s].kind in opt["dma_pseudo"])
            if ok and s >= 0 and per_step.get(s, 0) + b.units > opt["maxunits"]: ok = False
            if ok and opt.get("rprefer") and b.need - s >= opt["rprefer"] and s >= 0 and try_park(b, s): break
            if ok and reserve(b, s, b.need): break
            if ok and s >= 0 and not opt.get("pre_only") and try_park(b, s): break
            s += 1
        assert b.addr is not None, b.name
        per_step[b.issue] = per_step.get(b.issue, 0) + b.units
        last = b.issue; lastc[iskv] = b.issue
    issue_at = {}
    order = [byname[n] for n, w in early.items() if w == "first"] + [b for b in tiles if b.name not in early or early[b.name] != "first"]
    if opt.get("init_order"):
        io = [byname[n] for n in opt["init_order"]]
        order = io + [b for b in order if b not in io]
    for b in order: issue_at.setdefault(b.issue, []).append(b)
    for s_, lst in issue_at.items():
        if s_ >= 0: lst.sort(key=lambda b: (b.name in early and early[b.name] != "first"))
    if verbose:
        for i, st in enumerate(seq):
            print(i, st, [(b.name, b.issue, b.addr // UNIT) + ((b.reg, b.flush) if b.reg else ()) for b in st.bufs], "issues:", [b.name for b in issue_at.get(i, [])], "occ", sum(occ[i + 1]))
        print("prologue:", [b.name for b in issue_at.get(-1, [])])
    return seq, idx, X, issue_at

def gen(name, stamps=False, opt=None, verbose=False):
    o = dict(DEF); o.update(opt or {}); opt = o
    seq, idx, X, issue_at = plan(opt, verbose)
    NS = len(seq); PF = opt["PF"]
    ntf = opt.get("kvfl", "nt" if opt["nt"] else "")
    T0, T1, T2, T3 = sr(S_T0), sr(S_T1), sr(S_T2), sr(S_T3)
    a = Asm()
    stamp_n = [0]; stamp_names = []
    def stamp(nm="-", record=True):
        if not stamps: return
        k = stamp_n[0]; stamp_n[0] += 1
        if record: stamp_names.append(nm)
        a.raw(f"s_memtime s[{S_ST}:{S_ST+1}]", "smem")
        a.wait_lds_all()
        a.s("s_sub_u32", sr(S_ST), sr(S_ST), sr(S_TM))
        a.add(I(f"v_writelane_b32 v{V_ST + k // 64}, s{S_ST}, {k % 64}", "valu", [("s", S_ST)], [("v", V_ST + k // 64)]))

    a.s("s_cmp_ge_u32", "s2", 256)
    a.raw("s_cbranch_scc1 L_end", "branch")
    a.raw("s_load_dwordx16 s[4:19], s[0:1], 0", "smem")
    if stamps: a.raw(f"s_memtime s[{S_TM}:{S_TM+1}]", "smem")
    if opt["cpf_top"]:
        a.raw(f"s_getpc_b64 s[{S_CP}:{S_CP+1}]", "salu")
        a.label("L_pc")
        a.raw(f"s_sub_u32 s{S_CP}, s{S_CP}, L_pc-{KN}", "salu"); a.raw(f"s_subb_u32 s{S_CP+1}, s{S_CP+1}, 0", "salu")
        a.raw(f"s_and_b32 s{S_CP+1}, s{S_CP+1}, 0xffff", "salu"); a.raw(f"s_mov_b32 s{S_CP+2}, L_codeend-{KN}", "salu")
        a.raw(f"s_mov_b32 s{S_CP+3}, 0x20000", "salu"); a.raw("s_bfe_u32 s80, s2, 0x10003", "salu")
        a.raw("s_lshl_b32 s80, s80, 15", "salu")
        a.v("v_lshlrev_b32", vr(V_T), 7, "v0")
        a.raw(f"buffer_load_dword v{V_DUM}, v{V_T}, s[{S_CP}:{S_CP+3}], s80 offen", "vmem_load")
    a.s("s_lshr_b32", sr(S_B), "s2", 4)
    a.s("s_and_b32", T0, "s2", 7); a.s("s_lshl_b32", T0, T0, 1); a.s("s_bfe_u32", T1, "s2", "0x10003"); a.s("s_or_b32", sr(S_J), T0, T1)
    tv = [f"v{V_S+i}" for i in range(20)]
    vl, vw, vi32, vhf, vg1, vrr, vcc_, vf, vlp, vqh, vrh, t0, t1, t2, t3, t4 = tv[:16]
    a.v("v_and_b32", vl, 63, "v0"); a.v("v_lshrrev_b32", vw, 6, "v0")
    a.v("v_readfirstlane_b32", sr(S_W), vw)
    a.v("v_lshlrev_b32", vr(V_L16), 4, vl)
    def f16_of(dst, r, tmp):
        a.v("v_and_b32", dst, 2, r); a.v("v_lshlrev_b32", dst, 5, dst)
        a.v("v_and_b32", tmp, 4, r); a.v("v_lshlrev_b32", tmp, 3, tmp); a.v("v_or_b32", dst, dst, tmp)
        a.v("v_and_b32", tmp, 8, r); a.v("v_lshlrev_b32", tmp, 1, tmp); a.v("v_or_b32", dst, dst, tmp)
    for n in range(6):
        a.v("v_add_u32", t0, n * 64, vl)
        a.v("v_mul_u32_u24", t1, 2731, t0); a.v("v_lshrrev_b32", t1, 16, t1)
        f16_of(vf, t1, t2)
        a.v("v_lshlrev_b32", t0, 4, t0); a.v("v_xor_b32", t0, t0, vf)
        a.v("v_subrev_u32", vr(V_KV + n), (n & 3) * 1024, t0)
        a.v("v_mul_u32_u24", t2, 12288 - 384, t1); a.v("v_add_u32", t2, t2, t0)
        a.v("v_subrev_u32", vr(V_WQ + n), (n & 3) * 1024, t2)
    for od, reg in ((0, V_E), (1, V_O)):
        a.v("v_lshrrev_b32", t1, 3, vl)
        if od: a.v("v_add_u32", t1, 8, t1)
        f16_of(vf, t1, t2)
        a.v("v_and_b32", t0, 7, vl); a.v("v_lshlrev_b32", t0, 4, t0); a.v("v_xor_b32", t0, t0, vf)
        a.v("v_mul_u32_u24", t1, 1280, t1); a.v("v_add_u32", vr(reg), t0, t1)
        if od: a.v("v_subrev_u32", vr(reg), 1024, vr(reg))
    a.s("s_and_b32", T0, sr(S_W), 1)
    a.s("s_mul_i32", sr(S_LR), T0, 12288); a.s("s_mul_i32", sr(S_LA), sr(S_W), 6144)
    a.s("s_mul_i32", sr(S_QR), T0, 32 * 12288); a.s("s_mul_i32", sr(S_QA), sr(S_W), 16 * 12288)
    a.s("s_mul_i32", sr(S_OR), T0, 96 * 1280); a.s("s_mul_i32", sr(S_OA), sr(S_W), 48 * 1280)
    a.s("s_lshl_b32", sr(S_XL), sr(S_W), 11); a.s("s_mul_i32", sr(S_XG), sr(S_W), 16 * 1280)
    a.s("s_lshr_b32", T0, sr(S_W), 1)
    a.s("s_lshl_b32", sr(S_RH128), T0, 7)
    a.s("s_lshl_b32", T1, T0, 8); a.s("s_sub_u32", sr(S_PVB), 128, T1)
    a.s("s_mul_i32", T1, T0, 384); a.s("s_sub_u32", sr(S_PVC), 256, T1)
    a.s("s_cmp_ge_u32", sr(S_B), 10); a.s("s_cselect_b32", T0, 10, 0); a.s("s_sub_u32", sr(S_ROT), sr(S_B), T0)
    a.s("s_mov_b32", sr(S_ROTO), sr(S_ROT))
    if opt.get("kvrot") == 1: a.s("s_add_u32", sr(S_KVR), sr(S_B), sr(S_J))
    elif opt.get("kvrot") == 2: a.s("s_mov_b32", sr(S_KVR), sr(S_B))
    elif opt.get("kvrot") == 3: a.s("s_lshr_b32", sr(S_KVR), "s2", 3)
    if opt.get("rot2"):
        a.s("s_bfe_u32", T0, "s2", "0x10003"); a.s("s_mul_i32", T0, T0, 5); a.s("s_add_u32", sr(S_ROT), sr(S_B), T0)
        for _ in range(2):
            a.s("s_cmp_ge_u32", sr(S_ROT), 10); a.s("s_cselect_b32", T0, 10, 0); a.s("s_sub_u32", sr(S_ROT), sr(S_ROT), T0)
    if not opt["rot"]: a.s("s_mov_b32", sr(S_ROT), 0)
    a.raw("s_waitcnt lgkmcnt(0)", "wait")
    stamp("kernarg")
    def mk_srd(dst, ptr, off_lo=None, off_hi=None, size=0):
        if off_lo is None:
            a.s("s_mov_b32", sr(dst), sr(ptr)); a.s("s_and_b32", sr(dst + 1), sr(ptr + 1), "0xffff")
        else:
            a.s("s_add_u32", sr(dst), sr(ptr), off_lo)
            a.s("s_addc_u32", sr(dst + 1), sr(ptr + 1), off_hi if off_hi is not None else 0)
            a.s("s_and_b32", sr(dst + 1), sr(dst + 1), "0xffff")
        a.s("s_mov_b32", sr(dst + 2), size); a.s("s_mov_b32", sr(dst + 3), "0x20000")
    a.s("s_lshl_b32", T2, sr(S_B), 4); a.s("s_add_u32", T2, T2, sr(S_J))
    a.s("s_mul_i32", T0, T2, 393216); a.s("s_mul_hi_u32", T1, T2, 393216)
    mk_srd(S_K, 6, T0, T1, 393216); mk_srd(S_V, 8, T0, T1, 393216)
    a.s("s_mul_i32", T0, sr(S_J), 768); mk_srd(S_WQ, 10, T0, None, 0); a.s("s_sub_u32", sr(S_WQ + 2), 7864320, T0)
    a.s("s_mul_i32", T0, sr(S_B), 81920); mk_srd(S_X, 4, T0, None, 81920)

    def late_setup():
        a.v("v_and_b32", vi32, 31, vl); a.v("v_lshrrev_b32", vhf, 5, vl)
        a.v("v_bfe_u32", vg1, vl, 4, 1); a.v("v_bfe_u32", vrr, vl, 2, 2); a.v("v_and_b32", vcc_, 3, vl)
        a.v("v_and_b32", vqh, 1, vw); a.v("v_lshrrev_b32", vrh, 1, vw)
        a.v("v_lshlrev_b32", vlp, 5, vg1); a.v("v_lshlrev_b32", t0, 3, vcc_); a.v("v_add_u32", vlp, vlp, t0)
        f16_of(vf, vi32, t2)
        a.v("v_lshlrev_b32", t0, 4, vhf); a.v("v_xor_b32", t0, t0, vf)
        a.v("v_lshlrev_b32", t1, 5, vrh); a.v("v_add_u32", t1, t1, vi32); a.v("v_mul_u32_u24", t1, 384, t1); a.v("v_add_u32", vr(V_BK), t0, t1)
        a.v("v_lshlrev_b32", t1, 5, vqh); a.v("v_add_u32", t1, t1, vi32); a.v("v_lshlrev_b32", t1, 7, t1); a.v("v_add_u32", vr(V_BX), t0, t1)
        a.v("v_and_b32", vf, 2, vrr); a.v("v_lshlrev_b32", vf, 5, vf); a.v("v_lshlrev_b32", t2, 5, vhf); a.v("v_or_b32", vf, vf, t2)
        a.v("v_lshlrev_b32", t0, 6, vrh); a.v("v_add_u32", t0, t0, vlp); a.v("v_xor_b32", t0, t0, vf)
        a.v("v_lshlrev_b32", t1, 2, vhf); a.v("v_add_u32", t1, t1, vrr)
        a.v("v_lshlrev_b32", t2, 7, t1); a.v("v_add_u32", vr(V_BO), t0, t2)
        a.v("v_lshlrev_b32", t2, 5, vrh); a.v("v_add_u32", t1, t1, t2); a.v("v_mul_u32_u24", t1, 384, t1)
        a.v("v_add_u32", t1, t1, t0); a.v("v_lshlrev_b32", t2, 7, vrh); a.v("v_add_u32", vr(V_BV), t1, t2)
        a.v("v_and_b32", vf, 2, vrr); a.v("v_lshlrev_b32", vf, 5, vf); a.v("v_lshlrev_b32", t2, 4, vhf); a.v("v_or_b32", vf, vf, t2)
        a.v("v_lshlrev_b32", t0, 6, vrh); a.v("v_add_u32", t0, t0, vlp); a.v("v_xor_b32", t0, t0, vf)
        a.v("v_lshlrev_b32", t1, 3, vhf); a.v("v_add_u32", t1, t1, vrr); a.v("v_mul_u32_u24", t1, 384, t1)
        a.v("v_add_u32", t1, t1, t0); a.v("v_lshlrev_b32", t2, 7, vrh); a.v("v_add_u32", vr(V_BQ), t1, t2)
        a.v("v_mul_u32_u24", t0, 12288, vqh); a.v("v_add_u32", vr(V_XA + 1), t0, vr(V_L16))
        a.v("v_mul_u32_u24", t1, 6144, vrh); a.v("v_add_u32", vr(V_XA), vr(V_XA + 1), t1)
        a.v("v_mul_u32_u24", t0, 12288, vw); a.v("v_add_u32", vr(V_XA + 2), t0, vr(V_L16))
        a.v("v_xor_b32", t0, 2, vw); a.v("v_mul_u32_u24", t0, 12288, t0); a.v("v_add_u32", vr(V_XP), t0, vr(V_L16))
        a.s("s_mul_i32", T0, sr(S_J), 491520); mk_srd(S_WO, 12, T0, None, 491520)
        a.s("s_mul_i32", T0, sr(S_B), 81920); mk_srd(S_OUT, 14, T0, None, 81920)
        a.s("s_mul_i32", T0, sr(S_B), 16 * 81920); mk_srd(S_P, 18, T0, None, 16 * 81920)
        if opt["tail4"]:
            a.s("s_mul_i32", T0, sr(S_B), 331776); a.s("s_add_u32", T0, T0, 0x2000000); mk_srd(S_F, 18, T0, None, 327680 + 256)
        else:
            a.s("s_lshl_b32", T0, sr(S_B), 11); a.s("s_add_u32", T0, T0, 0x2000000); mk_srd(S_F, 18, T0, None, 2048)
        mk_srd(S_DBG, 16, None, None, 256)
        a.s("s_mov_b32", sr(S_C), hex(f32bits(math.log2(math.e) / math.sqrt(192.0))))
        a.s("s_mul_i32", sr(S_PB), sr(S_J), 81920); a.s("s_lshl_b32", T0, sr(S_W), 11); a.s("s_add_u32", sr(S_PB), sr(S_PB), T0)
    if stamps:
        a.v("v_mov_b32", vr(V_ST + 1), 0)

    def rot_tile(t, dst, out=False):
        a.s("s_add_u32", dst, sr(S_ROTO if out else S_ROT), t); a.s("s_cmp_ge_u32", dst, 10); a.s("s_cselect_b32", T3, 10, 0); a.s("s_sub_u32", dst, dst, T3)

    base_stamp = stamp_n[0]
    def program(role):
        a.vm_issued = 0; a.vm_done = 0; a.lds_issued = 0; a.lds_done = 0
        stamp_n[0] = base_stamp
        rec = (role == 0)
        def st_(nm): stamp(nm, rec)
        toks = {}
        def mine(b): return b.mode == role or b.mode == "a"
        def dma_items(b):
            if not mine(b): return []
            items = []; base = b.addr; allm = (b.mode == "a")
            np_ = 6 if allm else 12
            if b.kind in ("k", "v", "wq"):
                srdn = {"k": S_K, "v": S_V, "wq": S_WQ}[b.kind]; vo = V_WQ if b.kind == "wq" else V_KV
                fl = ntf if b.kind != "wq" else opt.get("wfl", "")
                gstride = 16 * 12288 if b.kind == "wq" else 6144
                lds0 = S_LA if allm else S_LR
                def mk(m):
                    g, mm = divmod(m, 6)
                    def f():
                        if m == 0:
                            if b.kind == "wq":
                                rot_tile(b.t, sr(S_SOFF)); a.s("s_mul_i32", sr(S_SOFF), sr(S_SOFF), 64 * 12288)
                                a.s("s_add_u32", sr(S_SOFF), sr(S_SOFF), sr(S_QA if allm else S_QR))
                                if b.h: a.s("s_add_u32", sr(S_SOFF), sr(S_SOFF), 384)
                            elif opt.get("kvrot"):
                                a.s("s_add_u32", sr(S_SOFF), sr(S_KVR), b.t); a.s("s_and_b32", sr(S_SOFF), sr(S_SOFF), 7)
                                a.s("s_mul_i32", sr(S_SOFF), sr(S_SOFF), 24576); a.s("s_add_u32", sr(S_SOFF), sr(S_SOFF), sr(lds0))
                                if b.h: a.s("s_add_u32", sr(S_SOFF), sr(S_SOFF), 196608)
                            else: a.s("s_add_u32", sr(S_SOFF), sr(lds0), b.h * 196608 + b.t * 24576)
                        if m == 6: a.s("s_add_u32", sr(S_SOFF), sr(S_SOFF), gstride)
                        if b.reg:
                            a.bload("buffer_load_dwordx4", rs(b.reg[0], b.reg[1] + 4 * m, 4), vr(vo + mm), srd(srdn), sr(S_SOFF), (mm & 3) * 1024, fl)
                        else:
                            if mm in (0, 4): a.s("s_add_u32", "m0", sr(lds0), base + g * 6144 + (4096 if mm == 4 else 0))
                            a.dma(vr(vo + mm), srd(srdn), sr(S_SOFF), (mm & 3) * 1024, fl)
                        if m == np_ - 1: toks[b.name] = a.vm_issued
                    return f
                for m in range(np_): items.append(mk(m))
            elif b.kind == "wo":
                def mk(m):
                    def f():
                        if m == 0:
                            rot_tile(b.t, sr(S_SOFF), True); a.s("s_lshl_b32", sr(S_SOFF), sr(S_SOFF), 7)
                            a.s("s_add_u32", sr(S_SOFF), sr(S_SOFF), sr(S_OA if allm else S_OR))
                            if b.h: a.s("s_add_u32", sr(S_SOFF), sr(S_SOFF), 245760)
                        if m % 4 == 0 and not b.reg: a.s("s_add_u32", "m0", sr(S_LA if allm else S_LR), base + m * 1024)
                        d = (m >> 1) * 20480 - (m & 3) * 1024 + (1024 if m & 1 else 0)
                        if d: a.s("s_add_u32", T2, sr(S_SOFF), d); so = T2
                        else: so = sr(S_SOFF)
                        if b.reg: a.bload("buffer_load_dwordx4", rs(b.reg[0], b.reg[1] + 4 * m, 4), vr(V_O if m & 1 else V_E), srd(S_WO), so, (m & 3) * 1024, opt.get("wfl", ""))
                        else: a.dma(vr(V_O if m & 1 else V_E), srd(S_WO), so, (m & 3) * 1024, opt.get("wfl", ""))
                        if m == np_ - 1: toks[b.name] = a.vm_issued
                    return f
                for m in range(np_): items.append(mk(m))
            elif b.kind == "x":
                def mk(m):
                    def f():
                        if m == 0:
                            rot_tile(b.t, sr(S_R8)); a.s("s_lshl_b32", sr(S_R8), sr(S_R8), 7); a.s("s_add_u32", sr(S_R8), sr(S_R8), sr(S_XG))
                            a.s("s_add_u32", "m0", sr(S_XL), base)
                        a.dma(vr(V_O if m & 1 else V_E), srd(S_X), sr(S_R8), m * 1024, opt.get("xfl", ""))
                        if m == 1: toks[b.name] = a.vm_issued
                    return f
                for m in range(2): items.append(mk(m))
            return items

        pro = issue_at.get(-1, [])
        n1 = opt["ninit"]
        if opt["xpf"]:
            a.v("v_lshlrev_b32", vr(V_T), 3, vr(V_L16))
            a.s("s_mul_i32", T2, sr(S_W), 20480)
            for k in range(3):
                a.bload("buffer_load_dword", vr(V_DUM), vr(V_T), srd(S_X), T2, 0, "")
                if k < 2: a.s("s_add_u32", T2, T2, 8192)
        if opt.get("pst"): st_("srd")
        if opt.get("tlbw"):
            a.v("v_mov_b32", vr(V_T + 1), 0)
            for sd_, offs in ((S_K, (0, 196608, 393212)), (S_V, (0, 196608, 393212))):
                for o_ in offs:
                    a.s("s_mov_b32", T2, o_)
                    a.bload("buffer_load_dword", vr(V_DUM), vr(V_T + 1), srd(sd_), T2, 0, "")
        for b in pro[:n1]:
            for f in dma_items(b): f()
            if opt.get("pst"): st_("i_" + b.name)
        st_("dma_issued")
        late_setup()
        if opt.get("pst"): st_("late")
        if opt.get("tlbw"):
            for sd_, offs in ((S_WO, (0, 491516)), (S_P, (0, 16 * 81920 - 4)), (S_F, (0,)), (S_OUT, (0, 81916))):
                for o_ in offs:
                    a.s("s_mov_b32", T2, o_)
                    a.bload("buffer_load_dword", vr(V_DUM), vr(V_T + 1), srd(sd_), T2, 0, "")
        for b in pro[n1:]:
            for f in dma_items(b): f()
        if opt.get("pst"): st_("xall")
        def wpf_items():
            p0, p1, p2 = vr(V_T + 13), vr(V_T + 14), vr(V_T + 15)
            def f1():
                a.v("v_min_u32", p0, 239, "v0")
                a.v("v_mul_u32_u24", p1, 10923, p0); a.v("v_lshrrev_b32", p1, 16, p1)
                a.v("v_mul_u32_u24", p2, 6, p1); a.v("v_sub_u32", p2, p0, p2); a.v("v_lshlrev_b32", p2, 7, p2)
                a.v("v_mul_u32_u24", p1, 12288, p1); a.v("v_add_u32", p1, p1, p2)
                a.s("s_mul_i32", T2, sr(S_B), 40 * 12288)
                a.bload("buffer_load_dword", vr(V_DUM), p1, srd(S_WQ), T2, 0, "")
            def f2():
                a.v("v_min_u32", p0, 239, "v0"); a.v("v_lshlrev_b32", p2, 7, p0)
                a.s("s_mul_i32", T3, sr(S_B), 30720)
                a.bload("buffer_load_dword", vr(V_DUM), p2, srd(S_WO), T3, 0, "")
            return f1, f2
        if opt["cpf"] and not opt["cpf_top"]:
            a.s("s_cmp_lg_u32", sr(S_W), 3); a.raw("s_cbranch_scc1 L_nocpf", "branch")
            a.raw(f"s_getpc_b64 s[{S_CP}:{S_CP+1}]", "salu")
            a.label("L_pc")
            a.raw(f"s_sub_u32 s{S_CP}, s{S_CP}, L_pc-{KN}", "salu"); a.raw(f"s_subb_u32 s{S_CP+1}, s{S_CP+1}, 0", "salu")
            a.raw(f"s_and_b32 s{S_CP+1}, s{S_CP+1}, 0xffff", "salu"); a.raw(f"s_mov_b32 s{S_CP+2}, L_codeend-{KN}", "salu")
            a.raw(f"s_mov_b32 s{S_CP+3}, 0x20000", "salu"); a.raw("s_bfe_u32 s80, s2, 0x50003", "salu")
            a.raw("s_mul_i32 s80, s80, CPF_LINES*128", "salu")
            a.v("v_lshlrev_b32", vr(V_T), 3, vr(V_L16))
            a.nop(2)
            a.raw(f"buffer_load_dword v{V_DUM}, v{V_T}, s[{S_CP}:{S_CP+3}], s80 offen", "vmem_load")
            a.label("L_nocpf")
        if role == 0:
            a.s("s_or_b32", T0, "s2", sr(S_W)); a.s("s_cmp_lg_u32", T0, 0)
            a.raw("s_cbranch_scc1 L_nononce", "branch")
            a.raw(f"s_memrealtime s[{S_NONCE}:{S_NONCE+1}]", "smem"); a.raw("s_waitcnt lgkmcnt(0)", "wait")
            a.s("s_or_b32", sr(S_NONCE), sr(S_NONCE), 1)
            a.v("v_mov_b32", vr(V_T + 2), sr(S_NONCE)); a.v("v_mov_b32", vr(V_T + 3), sr(S_NONCE + 1)); a.v("v_mov_b32", vr(V_T + 4), 0)
            a.raw(f"buffer_store_dwordx2 v[{V_T+2}:{V_T+3}], v{V_T+4}, {srd(S_DBG)}, 0 offen sc1", "vmem_store")
            a.label("L_nononce")

        def addr_items(i):
            st = seq[i]; W = V_W; its = []; sb = st.bufs[0].addr
            if st.kind == "QK":
                its.append(lambda: a.v("v_add_u32", vr(W), sb, vr(V_BK)))
                for k in (1, 2, 3): its.append(lambda k=k: a.v("v_xor_b32", vr(W + k), 32 * k, vr(W)))
            elif st.kind == "PV":
                its.append(lambda: a.v("v_add_u32", vr(W), sb, vr(V_BV)))
                its.append(lambda: a.v("v_xad_u32", vr(W + 1), vr(W), 64, sr(S_RH128)))
                its.append(lambda: a.v("v_xad_u32", vr(W + 2), vr(W), 64, sr(S_PVB)))
                its.append(lambda: a.v("v_add_u32", vr(W + 3), sr(S_PVC), vr(W)))
                for k in range(4): its.append(lambda k=k: a.v("v_xor_b32", vr(W + 4 + k), 16, vr(W + k)))
            elif st.kind == "Qp":
                its.append(lambda: a.v("v_add_u32", vr(W), sb, vr(V_BQ)))
                its.append(lambda: a.v("v_xad_u32", vr(W + 1), vr(W), 64, sr(S_RH128)))
                for k in range(2): its.append(lambda k=k: a.v("v_xor_b32", vr(W + 2 + k), 32, vr(W + k)))
                if st.h == 0 and st.bufs[1].need == i:
                    sx = st.bufs[1].addr
                    its.append(lambda: a.v("v_add_u32", vr(W + 4), sx, vr(V_BX)))
                    for k in (1, 2, 3): its.append(lambda k=k: a.v("v_xor_b32", vr(W + 4 + k), 32 * k, vr(W + 4)))
            elif st.kind == "Op":
                its.append(lambda: a.v("v_add_u32", vr(W), sb, vr(V_BO)))
                its.append(lambda: a.v("v_xor_b32", vr(W + 1), 16, vr(W)))
            return its
        def frag_spec(i, n):
            st = seq[i]; W = V_W; xb = []
            if st.kind == "QK":
                reads = [("ds_read_b128", 0, 4, vr(W + (n & 3)), 128 * (n >> 2))]
                D = rs("v", V_S + 16 * st.t, 16); B = rs("v", V_Q + 4 * n, 4); C = "0" if n == 0 else D
            elif st.kind == "PV":
                u, tau = n // 6, n % 6
                reg, add = {0: (0, 0), 1: (1, 0), 2: (0, 128), 3: (2, 0), 4: (3, 0), 5: (2, 128)}[tau]
                reads = [("ds_read_b64_tr_b16", 2 * hf, 2, vr(W + reg + 4 * hf), (16 * u + 8 * hf) * 384 + add) for hf in (0, 1)]
                D = rs("a", A_O(st.h) + 16 * tau, 16); B = rs("v", V_S + 16 * st.t + 4 * u, 4)
                C = "0" if (st.t == 0 and u == 0) else D
            elif st.kind == "Qp":
                ks, T = n // 3, n % 3
                reg, add = {0: (0, 0), 1: (1, 0), 2: (0, 128)}[T]
                reads = [("ds_read_b64_tr_b16", 2 * hf, 2, vr(W + reg + 2 * hf), (16 * ks + 4 * hf) * 384 + add) for hf in (0, 1)]
                D = rs("a", A_QACC + 16 * T, 16)
                xr = A_X + 4 * (st.t * 4 + ks); B = rs("a", xr, 4)
                if T == 0 and st.h == 0 and st.bufs[1].need == i: xb = [("ds_read_b128", rs("a", xr, 4), vr(W + 4 + ks), 0)]
                C = "0" if (st.t == 0 and ks == 0) else D
            else:
                reads = [("ds_read_b64_tr_b16", 2 * hf, 2, vr(W + hf), (16 * n + 8 * hf) * 128) for hf in (0, 1)]
                D = rs("a", A_OUT + 16 * st.t, 16)
                B = rs("a", A_OF + 4 * n, 4) if (st.h == 0 and i < idx["M21.0"]) else rs("v", V_Q + 4 * n, 4)
                C = "0" if (st.h == 0 and n == 0) else D
            return reads, xb, D, B, C
        gstart = {}; g = 0
        for i, st in enumerate(seq): gstart[i] = g; g += st.nm
        frag_tok = {}
        def issue_frag(i, n):
            reads, xb, D, B, C = frag_spec(i, n)
            gi = gstart[i] + n; rb = V_A + 4 * (gi % NRING); tok = None
            for (op, dst, addr, off) in xb: a.ds_read(op, dst, addr, off)
            for (op, ro, cnt, addr, off) in reads: tok = a.ds_read(op, rs("v", rb + ro, cnt), addr, off)
            frag_tok[gi] = tok

        def max_items(t, first):
            regs = [V_S + 16 * t + k for k in range(16)]; its = []
            if first:
                its.append(lambda: a.v("v_max3_f32", vr(V_M), vr(regs[0]), vr(regs[1]), vr(regs[2])))
                rest = regs[3:]
                for k in range(0, 12, 2): its.append(lambda k=k: a.v("v_max3_f32", vr(V_M), vr(V_M), vr(rest[k]), vr(rest[k + 1])))
                its.append(lambda: a.v("v_max_f32", vr(V_M), vr(V_M), vr(rest[12])))
            else:
                for k in range(0, 16, 2): its.append(lambda k=k: a.v("v_max3_f32", vr(V_M), vr(V_M), vr(regs[k]), vr(regs[k + 1])))
            return its
        def xhalf(reg, op):
            x0, x1 = vr(V_T), vr(V_T + 1)
            a.v("v_mov_b32", x0, vr(reg)); a.v("v_mov_b32", x1, vr(reg))
            a.v("v_permlane32_swap_b32", x0, x1); a.v(op, vr(reg), x0, x1)
        def scr_addr(dst, partner, buf):
            a.v("v_lshrrev_b32", dst, 2, vr(V_L16))
            a.s("s_lshl_b32", T2, sr(S_W), 8)
            if partner: a.s("s_xor_b32", T2, T2, 512)
            a.s("s_add_u32", T2, T2, buf.addr)
            a.v("v_add_u32", dst, T2, dst)
        def m_send(h):
            def f():
                xhalf(V_M, "v_max_f32"); scr_addr(vr(V_T + 2), False, X[f"m{h}"])
                a.ds_write("ds_write_b32", vr(V_T + 2), vr(V_M)); a.wait_lds_all()
            return f
        def m_recv(h):
            def f():
                scr_addr(vr(V_T + 2), True, X[f"m{h}"])
                tok = a.ds_read("ds_read_b32", vr(V_T + 3), vr(V_T + 2)); a.wait_lds(tok)
                a.v("v_max_f32", vr(V_M), vr(V_M), vr(V_T + 3)); a.v("v_mul_f32", vr(V_MC), sr(S_C), vr(V_M)); a.v("v_mov_b32", vr(V_L), 0)
                if opt.get("pks"): a.v("v_mov_b32", vr(V_L + 1), 0)
            return f
        def p_items(t):
            base = V_S + 16 * t; fs = []; gs = []
            for k in range(0, 16, 2):
                r0 = base + k
                def f(r0=r0):
                    if opt.get("pks"):
                        a.add(I(f"v_pk_fma_f32 v[{r0}:{r0+1}], v[{r0}:{r0+1}], s[{S_C}:{S_C+1}], v[{V_M}:{V_M+1}] op_sel:[0,0,1] op_sel_hi:[1,0,1] neg_lo:[0,0,1] neg_hi:[0,0,1]",
                                "valu", R("v", r0, 2) + R("v", V_M, 2) + [("s", S_C)], R("v", r0, 2)))
                    else:
                        a.v("v_fma_f32", vr(r0), vr(r0), sr(S_C), f"-v{V_MC}"); a.v("v_fma_f32", vr(r0 + 1), vr(r0 + 1), sr(S_C), f"-v{V_MC}")
                    a.v("v_exp_f32", vr(r0), vr(r0)); a.v("v_exp_f32", vr(r0 + 1), vr(r0 + 1))
                def g_(r0=r0, k=k):
                    if opt.get("pks"):
                        a.add(I(f"v_pk_add_f32 v[{V_L}:{V_L+1}], v[{V_L}:{V_L+1}], v[{r0}:{r0+1}]", "valu", R("v", V_L, 2) + R("v", r0, 2), R("v", V_L, 2)))
                    else:
                        a.v("v_add_f32", vr(V_L), vr(V_L), vr(r0)); a.v("v_add_f32", vr(V_L), vr(V_L), vr(r0 + 1))
                    a.v("v_cvt_pk_bf16_f32", vr(base + k // 2), vr(r0), vr(r0 + 1))
                fs.append(f); gs.append(g_)
            out = []
            for k in range(8):
                out.append(fs[k])
                if k >= 1: out.append(gs[k - 1])
            out.append(gs[7]); return out
        def l_send(h):
            def f():
                if opt.get("pks"): a.v("v_add_f32", vr(V_L), vr(V_L), vr(V_L + 1))
                xhalf(V_L, "v_add_f32"); scr_addr(vr(V_T + 2), False, X[f"l{h}"])
                a.ds_write("ds_write_b32", vr(V_T + 2), vr(V_L)); a.wait_lds_all()
            return f
        def q_write_items(buf):
            its = []
            for T in range(3):
                for u in range(2):
                    def f(T=T, u=u):
                        t = [vr(V_T + k) for k in range(8)]; q = [vr(V_T + 8 + k) for k in range(4)]
                        for k in range(8): a.v("v_accvgpr_read_b32", t[k], f"a{A_QACC + 16*T + 8*u + k}")
                        for k in range(4): a.v("v_cvt_pk_bf16_f32", q[k], t[2 * k], t[2 * k + 1])
                        a.v("v_permlane32_swap_b32", q[0], q[2]); a.v("v_permlane32_swap_b32", q[1], q[3])
                        a.v("v_add_u32", t[0], buf.addr, vr(V_XA))
                        a.ds_write("ds_write_b128", t[0], rs("v", V_T + 8, 4), (2 * T + u) * 1024)
                    its.append(f)
            its.append(lambda: a.wait_lds_all()); return its
        def frags_read_items(buf, dkind, dbase):
            its = [lambda: a.v("v_add_u32", vr(V_T + 12), buf.addr, vr(V_XA + 1))]
            for s_ in range(12): its.append(lambda s_=s_: a.ds_read("ds_read_b128", rs(dkind, dbase + 4 * s_, 4), vr(V_T + 12), s_ * 1024))
            its.append(lambda: a.wait_lds_all()); return its
        def o_send_items(buf, h):
            its = [lambda: a.v("v_add_u32", vr(V_T + 12), buf.addr, vr(V_XA + 2))]
            for k in range(12): its.append(lambda k=k: a.ds_write("ds_write_b128", vr(V_T + 12), rs("a", A_O(h) + 48 + 4 * k, 4), k * 1024))
            its.append(lambda: a.wait_lds_all()); return its
        def o_comb_items(bufa, lbuf, RB, h):
            its = []; rtok = {}
            def f0():
                a.v("v_add_u32", vr(V_T + 12), bufa.addr, vr(V_XP))
                scr_addr(vr(V_T + 13), True, lbuf)
                tl = a.ds_read("ds_read_b32", vr(V_T + 14), vr(V_T + 13))
                for k in range(12): rtok[k] = a.ds_read("ds_read_b128", rs("v", RB + 4 * k, 4), vr(V_T + 12), k * 1024)
                if opt.get("xpipe") and h == 1: a.wait_lds(tl)
                else: a.wait_lds_all()
                a.v("v_add_f32", vr(V_RINV), vr(V_L), vr(V_T + 14)); a.v("v_rcp_f32", vr(V_RINV), vr(V_RINV))
            its.append(f0)
            for fr in range(6):
                def f(fr=fr):
                    t = [vr(V_T + k) for k in range(8)]; q = [vr(V_T + 8 + k) for k in range(4)]
                    for k in range(8): a.v("v_accvgpr_read_b32", t[k], f"a{A_O(h) + 8*fr + k}")
                    if opt.get("xpipe") and h == 1: a.wait_lds(rtok[2 * fr + 1])
                    if opt["pk"]:
                        for k in range(0, 8, 2):
                            a.add(I(f"v_pk_add_f32 v[{V_T+k}:{V_T+k+1}], v[{V_T+k}:{V_T+k+1}], v[{RB+8*fr+k}:{RB+8*fr+k+1}]", "valu", R("v", V_T + k, 2) + R("v", RB + 8 * fr + k, 2), R("v", V_T + k, 2)))
                        for k in range(0, 8, 2):
                            a.add(I(f"v_pk_mul_f32 v[{V_T+k}:{V_T+k+1}], v[{V_T+k}:{V_T+k+1}], v[{V_L}:{V_L+1}] op_sel:[0,1] op_sel_hi:[1,1]", "valu", R("v", V_T + k, 2) + R("v", V_L, 2), R("v", V_T + k, 2)))
                    else:
                        for k in range(8): a.v("v_add_f32", t[k], t[k], vr(RB + 8 * fr + k))
                        for k in range(8): a.v("v_mul_f32", t[k], t[k], vr(V_RINV))
                    for k in range(4): a.v("v_cvt_pk_bf16_f32", q[k], t[2 * k], t[2 * k + 1])
                    a.ds_write("ds_write_b128", vr(V_T + 12), rs("v", V_T + 8, 4), fr * 1024)
                its.append(f)
            its.append(lambda: a.wait_lds_all()); return its
        def ofrags_read_items(buf, dkind, dbase):
            its = [lambda: a.v("v_add_u32", vr(V_T + 12), buf.addr, vr(V_XA + 1))]
            for s_ in range(12):
                off = (24576 + s_ * 1024) if s_ < 6 else (s_ - 6) * 1024
                its.append(lambda s_=s_, off=off: a.ds_read("ds_read_b128", rs(dkind, dbase + 4 * s_, 4), vr(V_T + 12), off))
            its.append(lambda: a.wait_lds_all()); return its
        ptok = {}
        PKB = V_S
        def pconv_items(t):
            tb = V_S + 80 + 16 * (t & 1)
            def f1():
                for k in range(16): a.v("v_accvgpr_read_b32", vr(tb + k), f"a{A_OUT + 16*t + k}")
            def f2():
                for k in range(8): a.v("v_cvt_pk_bf16_f32", vr(PKB + 8 * t + k), vr(tb + 2 * k), vr(tb + 2 * k + 1))
            return [f1, f2]
        def pst_item(t):
            def f3():
                rot_tile(t, T2, True); a.s("s_lshl_b32", T2, T2, 13); a.s("s_add_u32", T2, T2, sr(S_PB))
                a.bstore("buffer_store_dwordx4", rs("v", PKB + 8 * t, 4), vr(V_L16), srd(S_P), T2, 0, opt.get("pfl", "sc1"))
                ptok[t] = a.bstore("buffer_store_dwordx4", rs("v", PKB + 8 * t + 4, 4), vr(V_L16), srd(S_P), T2, 1024, opt.get("pfl", "sc1"))
                if opt["tail4"]:
                    CKR = 240 + 2 * (t & 3)
                    a.s("s_mul_i32", T2, sr(S_J), 20480); a.s("s_lshl_b32", T3, sr(S_W), 9); a.s("s_add_u32", T2, T2, T3)
                    a.s("s_add_u32", T2, T2, t * 2048)
                    for hh in range(2):
                        d = PKB + 8 * t + 4 * hh; c = vr(CKR + hh)
                        a.v("v_lshl_add_u32", c, vr(d + 1), 1, vr(d)); a.v("v_lshl_add_u32", c, vr(d + 2), 2, c)
                        a.v("v_lshl_add_u32", c, vr(d + 3), 3, c); a.v("v_sub_u32", c, sr(S_NONCE), c)
                        a.bstore("buffer_store_dword", c, vr(V_L4), srd(S_F), T2, 256 * hh, "sc1")
            return f3
        side = {i: [] for i in range(NS + 1)}
        def ix(n): return idx[n]
        for i, st in enumerate(seq):
            if st.kind == "QK":
                if not (st.h == 0 and st.t == 7): side[i + 1] += max_items(st.t, st.t == 0)
                if st.t == 7 and st.h == 1: side[i + 1] += [m_send(1)]
            if st.kind == "PV" and st.t < 7:
                side[i] += p_items(st.t + 1)
                if st.t == 6: side[i] += [l_send(st.h)]
            if st.kind == "Op" and st.h == 1: side[i + 1] += pconv_items(st.t)
        side[ix("Qp1.9") + 1] = q_write_items(X["xQ1"]) + side[ix("Qp1.9") + 1]
        side[ix("Qp1.9") + 2] = frags_read_items(X["xQ1"], "v", V_Q) + side[ix("Qp1.9") + 2]
        side[ix("Op1.0")] = [nonce_load] + side[ix("Op1.0")]
        if opt["tail4"]: side[ix("Op1.1")] = [lambda: a.v("v_lshrrev_b32", vr(V_L4), 2, vr(V_L16))] + side[ix("Op1.1")]
        side[ix("Op1.3")] = [nonce_check] + side[ix("Op1.3")]
        if opt["tail4"]:
            side[ix("Op1.6")] = [tail4_setup] + side[ix("Op1.6")]; side[ix("Op1.7")] = [tail4_setup2] + side[ix("Op1.7")]
            if opt.get("hint_at"): side[ix(opt["hint_at"])] = [hint_store] + side[ix(opt["hint_at"])]
        for stp, blks in opt["st_sched"].items():
            k = NS if stp == "end" else ix(stp)
            side[k] = side[k] + [pst_item(t) for t in blks]
        if opt.get("flagA_at"):
            def fa(): a.wait_vm(ptok[5]); flag_store(0)
            k_ = ix(opt["flagA_at"]); side[k_] = side[k_] + [fa]
        if opt.get("flagB1_at"):
            def fb(): a.wait_vm(ptok[7]); flag_store(1)
            side[NS] = [fb] + side[NS]
        if opt["wq_pf"] is not None: side[opt["wq_pf"]] = [wpf_items()[0]] + side[opt["wq_pf"]]
        if opt["wo_pf"] is not None: side[opt["wo_pf"]] = [wpf_items()[1]] + side[opt["wo_pf"]]
        side[ix("QK1.0")] = o_send_items(X["xO0a"], 0) + side[ix("QK1.0")]
        side[ix("QK1.1")] += o_comb_items(X["xO0a"], X["l0"], V_S + 64, 0)
        side[ix("QK1.2")] += ofrags_read_items(X["xO0a"], "a", A_OF)

        xearly = {}
        for t_ in range(10):
            bx = seq[t_].bufs[1]
            if bx.need != t_: xearly.setdefault(bx.need, []).append(bx)
        def xearly_items(bx):
            last = [None]
            def f0():
                a.v("v_add_u32", vr(V_T), bx.addr, vr(V_BX))
                for k in (1, 2, 3): a.v("v_xor_b32", vr(V_T + k), 32 * k, vr(V_T))
            its = [f0]
            for ks in range(4):
                def f(ks=ks): last[0] = a.ds_read("ds_read_b128", rs("a", A_X + 4 * (bx.t * 4 + ks), 4), vr(V_T + ks), 0)
                its.append(f)
            return its, last
        for s_, lst in xearly.items():
            its = []
            for bx in lst:
                it, last = xearly_items(bx); its += it
            its += [lambda: None] * max(4, len(its) // 2)
            its.append(lambda last=last: a.wait_lds(last[0]))
            side[s_] = its + side[s_]
        landed = set(); prefetched = {}
        def wait_tiles(i):
            tk = [toks[b.name] for b in seq[i].bufs if mine(b)] + [toks[b.name] for b in xearly.get(i, [])]
            if tk: a.wait_vm(max(tk))
        def can_ahead(i, j): return all((b.flush <= i - 1 if b.reg else b.issue <= i - opt.get("ahead_min", 2)) for b in seq[j].bufs + xearly.get(j, []))
        for st_b in seq:
            for b in st_b.bufs:
                if not b.reg: continue
                def fl0(b=b):
                    a.wait_vm(toks[b.name])
                    a.v("v_add_u32", vr(V_DUM), b.addr, vr(V_L16)); a.v("v_add_u32", vr(V_DUM), sr(S_LA), vr(V_DUM))
                its = [fl0]; lastw = [None]
                for m in range(6):
                    def fw(m=m, b=b, lastw=lastw): lastw[0] = a.ds_write("ds_write_b128", vr(V_DUM), rs(b.reg[0], b.reg[1] + 4 * m, 4), m * 1024)
                    its.append(fw)
                its.append(lambda lastw=lastw: a.wait_lds(lastw[0]))
                side[b.flush] = side[b.flush] + its
        for i, st in enumerate(seq):
            a.comment(f"---- step {i}: {st}")
            st_(repr(st))
            if st.nm == 0:
                def pdma():
                    for b in issue_at.get(i, []):
                        for f in dma_items(b): f()
                if st.kind == "X1":
                    a.barrier()
                    for f in q_write_items(X["xQ0"]): f()
                    a.barrier()
                    for f in frags_read_items(X["xQ0"], "v", V_Q)[:-1]: f()
                    pdma(); a.wait_lds_all()
                elif st.kind == "M1":
                    a.barrier()
                    for f in max_items(7, False): f()
                    m_send(0)(); pdma()
                elif st.kind == "M2":
                    a.barrier(); m_recv(st.h)(); pdma()
                    if st.h == 1:
                        for k in range(48): a.v("v_accvgpr_read_b32", vr(V_Q + k), f"a{A_OF + k}")
                    for f in p_items(0): f()
                elif st.kind == "X3":
                    a.barrier()
                    for f in o_send_items(X["xO1a"], 1): f()
                    pdma()
                elif st.kind == "X4":
                    a.barrier(); pdma()
                    for f in o_comb_items(X["xO1a"], X["l1"], V_S + 64, 1): f()
                continue
            if i not in landed: wait_tiles(i); landed.add(i)
            j = i + 1 if (i + 1 < NS and seq[i + 1].nm > 0) else None
            ahead = j is not None and can_ahead(i, j)
            if ahead: wait_tiles(j)
            a.barrier()
            if ahead: landed.add(j)
            oft = {}
            if repr(st) == "Op1.0":
                if opt.get("xpipe"):
                    a.v("v_add_u32", vr(V_T + 12), X["xO1a"].addr, vr(V_XA + 1))
                    for s_ in range(12):
                        off = (24576 + s_ * 1024) if s_ < 6 else (s_ - 6) * 1024
                        oft[s_] = a.ds_read("ds_read_b128", rs("v", V_Q + 4 * s_, 4), vr(V_T + 12), off)
                else:
                    for f in ofrags_read_items(X["xO1a"], "v", V_Q): f()
            n0 = prefetched.get(i, 0)
            if n0 == 0:
                for f in addr_items(i): f()
                for n in range(min(PF, st.nm)): issue_frag(i, n)
                n0 = min(PF, st.nm)
            dmw = []; dmk = []
            for b in issue_at.get(i, []):
                if opt["kv_late"] and b.kind in ("k", "v"): dmk += dma_items(b)
                else: dmw += dma_items(b)
            sd = list(side[i])
            if dmk and dmw and False: pass
            queue = dmw + sd + dmk if opt["kv_late"] else dmw + sd
            ndm_front = len(dmw) if opt["front"] else 0
            if opt.get("op1_spread") and st.kind == "Op" and st.h == 1: ndm_front = 0
            if not opt["front"] and not (st.kind == "Op" and st.h == 1):
                dm = list(dmw); queue = []; s2 = list(sd)
                ratio = max(1, round(len(s2) / max(1, len(dm)))) if dm else 1
                while dm or s2:
                    if dm: queue.append(dm.pop(0))
                    for _ in range(ratio):
                        if s2: queue.append(s2.pop(0))
                queue += dmk
            nq = len(queue); done = 0; issued = n0
            for n in range(st.nm):
                if issued < st.nm: issue_frag(i, issued); issued += 1
                elif ahead:
                    k = issued - st.nm
                    if k == 0 and prefetched.get(j, 0) == 0:
                        for f in addr_items(j): f()
                    if k < min(PF, seq[j].nm): issue_frag(j, k); prefetched[j] = k + 1; issued += 1
                gi = gstart[i] + n
                a.wait_lds(max(frag_tok[gi], oft.get(n, 0)))
                reads, xb, D, B, C = frag_spec(i, n)
                a.mfma(D, rs("v", V_A + 4 * (gi % NRING), 4), B, C, shape="32x32x16")
                target = math.ceil(nq * (n + 1) / st.nm)
                if ndm_front: target = max(target, min(ndm_front, math.ceil(ndm_front * (n + 1) / 7)))
                while done < min(target, nq): queue[done](); done += 1
            assert done == nq
        ptok_ref[0] = ptok
        tail(side[NS], st_)

    VN = 254
    VFA = 250
    VFO = 249
    LB = 128; ACC = 240
    vt = [vr(V_T + k) for k in range(8)]
    tokA = [None]
    def nonce_load():
        a.v("v_mov_b32", vr(VFO), 0)
        tokA[0] = a.bload("buffer_load_dwordx2", rs("v", VN, 2), vr(VFO), srd(S_DBG), 0, 0, "sc1")
    def flag_store(stage):
        a.s("s_lshl_b32", T0, sr(S_J), 3); a.s("s_lshl_b32", T1, sr(S_W), 7); a.s("s_add_u32", T0, T0, T1); a.v("v_mov_b32", vt[0], T0)
        a.bstore("buffer_store_dwordx2", rs("v", VN, 2), vt[0], srd(S_F), 0, stage * 512, "sc1")
    def nonce_check():
        a.wait_vm(tokA[0])
        a.v("v_readfirstlane_b32", T0, vr(VN)); a.nop(2)
        a.s("s_cmp_lg_u32", T0, 0); a.raw("s_cbranch_scc1 L_nok", "branch")
        a.s("s_mov_b32", T1, 0); a.v("v_mov_b32", vt[0], 0)
        a.label("L_nonce")
        a.s("s_add_u32", T1, T1, 1); a.s("s_cmp_gt_u32", T1, 100000); a.raw("s_cbranch_scc1 L_nok", "branch")
        a.raw(f"buffer_load_dwordx2 v[{VN}:{VN+1}], {vt[0]}, {srd(S_DBG)}, 0 offen sc1", "vmem_load")
        a.raw("s_waitcnt vmcnt(0)", "wait")
        a.v("v_readfirstlane_b32", T0, vr(VN)); a.nop(2)
        a.s("s_cmp_eq_u32", T0, 0); a.raw("s_cbranch_scc1 L_nonce", "branch")
        a.label("L_nok")
        a.s("s_mov_b32", sr(S_NONCE), T0)
    def flags_ok(regs, fail_label):
        a.add(I(f"v_cmp_eq_u32 vcc, v{regs}, v{VN}", "valu", [("v", regs), ("v", VN)], [("vcc", 0)]))
        a.add(I(f"v_cmp_eq_u32 s[{S_SAVE}:{S_SAVE+1}], v{regs+1}, v{VN+1}", "valu", [("v", regs + 1)], [("s", S_SAVE), ("s", S_SAVE + 1)]))
        a.nop(2)
        a.s("s_and_b64", f"s[{S_SAVE}:{S_SAVE+1}]", f"s[{S_SAVE}:{S_SAVE+1}]", "vcc")
        a.raw(f"s_cmp_eq_u64 s[{S_SAVE}:{S_SAVE+1}], -1", "salu")
        a.raw(f"s_cbranch_scc0 {fail_label}", "branch")
    def poll(stage, tag):
        a.s("s_bfe_u32", T0, sr(S_CH), "0x20001"); a.s("s_lshl_b32", T0, T0, 7)
        if stage is None:
            a.s("s_sub_u32", T1, sr(S_W), 1); a.s("s_lshl_b32", T1, T1, 9); a.s("s_add_u32", sr(S_CP), T0, T1)
        else: a.s("s_add_u32", sr(S_CP), T0, stage * 512)
        a.v("v_lshrrev_b32", vr(VFO), 1, vr(V_L16)); a.v("v_and_b32", vr(VFO), 127, vr(VFO))
        a.s("s_mov_b32", T1, 0)
        a.label(f"L_poll{tag}")
        a.s("s_add_u32", T1, T1, 1); a.s("s_cmp_gt_u32", T1, 200000); a.raw(f"s_cbranch_scc1 L_pok{tag}", "branch")
        a.raw(f"buffer_load_dwordx2 v[{VFA}:{VFA+1}], v{VFO}, {srd(S_F)}, s{S_CP} offen {opt.get('ffl', 'sc1')}", "vmem_load")
        a.raw("s_waitcnt vmcnt(0)", "wait")
        flags_ok(VFA, f"L_poll{tag}")
        a.label(f"L_pok{tag}")
    S_CH = S_R8
    def chunk_addr(cidx_s, pos0):
        a.s("s_lshr_b32", T2, cidx_s, 3); a.s("s_add_u32", T2, T2, sr(S_ROTO))
        if pos0: a.s("s_add_u32", T2, T2, pos0)
        a.s("s_cmp_ge_u32", T2, 10); a.s("s_cselect_b32", T3, 10, 0); a.s("s_sub_u32", T2, T2, T3)
        a.s("s_lshl_b32", T2, T2, 3); a.s("s_and_b32", T3, cidx_s, 7); a.s("s_add_u32", sr(S_CH), T2, T3)
        a.s("s_lshl_b32", T2, sr(S_CH), 10)
    def red_loads(LB=LB):
        for p in range(16):
            a.s("s_add_u32", T3, T2, p * 81920)
            a.raw(f"buffer_load_dwordx4 v[{LB+4*p}:{LB+4*p+3}], v{V_L16}, {srd(S_P)}, {T3} offen {opt.get('rfl', 'sc1')}", "vmem_load")
    def red_sum_store(LB=LB, extra=0, S_CH=S_CH):
        a.s("s_mov_b32", sr(S_SAVE), "0x3f80"); a.s("s_mov_b32", sr(S_SAVE + 1), "0x3f800000")
        for p in range(16):
            a.raw(f"s_waitcnt vmcnt({15-p+extra})", "wait")
            for k in range(4):
                lo, hi = vr(ACC + 2 * k), vr(ACC + 2 * k + 1); r = vr(LB + 4 * p + k)
                if p == 0: a.v("v_lshlrev_b32", lo, 16, r); a.v("v_and_b32", hi, "0xffff0000", r)
                else: a.v("v_dot2c_f32_bf16", lo, sr(S_SAVE), r); a.v("v_dot2c_f32_bf16", hi, sr(S_SAVE + 1), r)
        cS = sr(S_CH)
        a.s("s_lshr_b32", T2, cS, 3); a.s("s_lshl_b32", T2, T2, 7)
        a.s("s_bfe_u32", T3, cS, "0x10002"); a.s("s_lshl_b32", T3, T3, 6); a.s("s_add_u32", T2, T2, T3)
        a.s("s_and_b32", T3, cS, 1); a.s("s_lshl_b32", T3, T3, 5); a.s("s_add_u32", T2, T2, T3)
        a.s("s_bfe_u32", T3, cS, "0x10001"); a.s("s_mul_i32", T3, T3, 32 * 1280); a.s("s_add_u32", T2, T2, T3)
        PK = V_T + 8
        for k in range(4): a.v("v_cvt_pk_bf16_f32", vr(PK + k), vr(ACC + 2 * k), vr(ACC + 2 * k + 1))
        a.v("v_permlane32_swap_b32", vr(PK), vr(PK + 2)); a.v("v_permlane32_swap_b32", vr(PK + 1), vr(PK + 3))
        a.v("v_and_b32", vt[4], 31, "v0"); a.v("v_mul_u32_u24", vt[4], 1280, vt[4])
        a.v("v_bfe_u32", vt[5], "v0", 5, 1); a.v("v_lshlrev_b32", vt[5], 4, vt[5]); a.v("v_add_u32", vt[4], vt[4], vt[5])
        a.add(I(f"buffer_store_dwordx4 v[{PK}:{PK+3}], {vt[4]}, {srd(S_OUT)}, {T2} offen {opt.get('ofl', '')}".rstrip(), "vmem_store", R("v", PK, 4) + [("v", V_T + 4)], []))
    S_GW = S_SOFF
    AID = 44; TT = [vr(32), vr(33), vr(34), vr(35)]; DD = 240
    TDA = 224; TCA = 228; TDB = 232; TCB = 236
    MASK, SJ, SD, SC, IT = 92, 93, 96, 97, 98
    def aid_build2():
        m, hf, e, val = vr(36), vr(37), vr(38), vr(39)
        a.v("v_and_b32", m, 31, "v0"); a.v("v_bfe_u32", hf, "v0", 5, 1)
        a.v("v_lshrrev_b32", e, 3, m)
        a.v("v_and_b32", val, 1, m); a.v("v_lshlrev_b32", val, 4, val)
        a.v("v_mov_b32", vr(AID), "0x3f80"); a.v("v_lshlrev_b32", val, val, vr(AID))
        a.add(I(f"v_cmp_eq_u32 vcc, {e}, {hf}", "valu", [("v", 38), ("v", 37)], [("vcc", 0)]))
        a.add(I(f"v_cndmask_b32 {val}, 0, {val}, vcc", "valu", [("v", 39), ("vcc", 0)], [("v", 39)]))
        a.v("v_bfe_u32", e, m, 1, 2)
        for k in range(4):
            a.add(I(f"v_cmp_eq_u32 vcc, {k}, {e}", "valu", [("v", 38)], [("vcc", 0)]))
            a.add(I(f"v_cndmask_b32 v{AID+k}, 0, {val}, vcc", "valu", [("v", 39), ("vcc", 0)], [("v", AID + k)]))
    def chunk_setup(c_s, CH, DO, CK):
        a.s("s_lshr_b32", T2, c_s, 3)
        a.s("s_lshl_b32", sr(CK), c_s, 8)
        a.s("s_add_u32", T2, T2, sr(S_ROTO))
        a.s("s_cmp_ge_u32", T2, 10); a.s("s_cselect_b32", T3, 10, 0); a.s("s_sub_u32", T2, T2, T3)
        a.s("s_lshl_b32", T2, T2, 3); a.s("s_and_b32", T3, c_s, 7); a.s("s_add_u32", sr(CH), T2, T3)
        a.s("s_lshl_b32", sr(DO), sr(CH), 10)
    def chunk_loads(DB, CB, DO, CK):
        for p in range(16):
            if p: a.s("s_add_u32", T2, sr(DO), p * 81920); a.s("s_add_u32", T3, sr(CK), p * 20480)
            so, sc = (T2, T3) if p else (sr(DO), sr(CK))
            a.raw(f"buffer_load_dwordx4 v[{DB+4*p}:{DB+4*p+3}], v{V_L16}, {srd(S_P)}, {so} offen sc1", "vmem_load")
            a.raw(f"buffer_load_dword v{CB+p}, v{V_L4}, {srd(S_F)}, {sc} offen sc1", "vmem_load")
    def verify(d, c, t):
        a.raw(f"v_lshl_add_u32 {t}, v{d+1}, 1, v{c}", "valu"); a.raw(f"v_lshl_add_u32 {t}, v{d+2}, 2, {t}", "valu")
        a.raw(f"v_lshl_add_u32 {t}, v{d+3}, 3, {t}", "valu"); a.raw(f"v_add_u32 {t}, {t}, v{d}", "valu")
        a.raw(f"v_cmp_ne_u32 vcc, s{S_NONCE}, {t}", "valu")
    def acc(d): a.raw(f"v_mfma_f32_32x32x16_bf16 v[{DD}:{DD+15}], v[{AID}:{AID+3}], v[{d}:{d+3}], v[{DD}:{DD+15}]", "other")
    def chunk_process(tag, DB, CB, CH, DO, CK, extra):
        for k in range(16): a.raw(f"v_mov_b32 v{DD+k}, 0", "valu")
        a.raw(f"s_mov_b32 s{MASK}, 0", "salu")
        for p in range(16):
            a.raw(f"s_waitcnt vmcnt({2*(15-p)+extra})", "wait")
            verify(DB + 4 * p, CB + p, TT[p & 3])
            a.raw(f"s_cbranch_vccz L_ok{tag}{p}", "branch")
            a.raw(f"s_bitset1_b32 s{MASK}, {p}", "salu"); a.raw(f"s_branch L_nx{tag}{p}", "branch")
            a.label(f"L_ok{tag}{p}"); acc(DB + 4 * p); a.label(f"L_nx{tag}{p}")
        a.label(f"L_pend{tag}")
        a.raw(f"s_cmp_eq_u32 s{MASK}, 0", "salu"); a.raw(f"s_cbranch_scc1 L_done{tag}", "branch")
        if opt.get("hint_at"):
            a.raw(f"s_bfe_u32 s{SC}, s{CH}, 0x20001", "salu"); a.raw(f"s_lshl_b32 s{SC}, s{SC}, 6", "salu")
            a.raw(f"s_add_u32 s{SC}, s{SC}, 327680", "salu")
            a.raw(f"s_mov_b32 s{IT}, 0", "salu")
            def hl(r): a.raw(f"buffer_load_dword v{r}, v38, {srd(S_F)}, s{SC} offen sc1", "vmem_load")
            def hc(r):
                a.raw("s_waitcnt vmcnt(1)", "wait")
                a.raw(f"v_cmp_eq_u32 vcc, s{S_NONCE}, v{r}", "valu"); a.raw("s_nop 1", "other")
                a.raw(f"s_and_b32 s{SD}, vcc_lo, s{MASK}", "salu"); a.raw(f"s_cbranch_scc1 L_hgot{tag}", "branch")
            hl(TCA)
            a.label(f"L_hp{tag}")
            hl(TCB); hc(TCA); hl(TCA); hc(TCB)
            a.raw(f"s_add_u32 s{IT}, s{IT}, 1", "salu"); a.raw(f"s_cmp_lt_u32 s{IT}, 50000", "salu")
            a.raw(f"s_cbranch_scc1 L_hp{tag}", "branch")
            a.raw(f"s_mov_b32 s{SD}, s{MASK}", "salu")
            a.label(f"L_hgot{tag}")
            a.raw(f"s_ff1_i32_b32 s{SJ}, s{SD}", "salu")
        else:
            a.raw(f"s_ff1_i32_b32 s{SJ}, s{MASK}", "salu")
        a.raw(f"s_bitset0_b32 s{MASK}, s{SJ}", "salu")
        a.raw(f"s_mul_i32 s{SD}, s{SJ}, 81920", "salu"); a.raw(f"s_add_u32 s{SD}, s{SD}, s{DO}", "salu")
        a.raw(f"s_mul_i32 s{SC}, s{SJ}, 20480", "salu"); a.raw(f"s_add_u32 s{SC}, s{SC}, s{CK}", "salu")
        a.raw(f"s_mov_b32 s{IT}, 0", "salu")
        def pl(TD, TC):
            a.raw(f"buffer_load_dwordx4 v[{TD}:{TD+3}], v{V_L16}, {srd(S_P)}, s{SD} offen sc1", "vmem_load")
            a.raw(f"buffer_load_dword v{TC}, v{V_L4}, {srd(S_F)}, s{SC} offen sc1", "vmem_load")
        pl(TDA, TCA)
        a.label(f"L_poll{tag}")
        pl(TDB, TCB); a.raw("s_waitcnt vmcnt(2)", "wait"); verify(TDA, TCA, TT[0])
        a.raw(f"s_cbranch_vccz L_gotA{tag}", "branch")
        pl(TDA, TCA); a.raw("s_waitcnt vmcnt(2)", "wait"); verify(TDB, TCB, TT[1])
        a.raw(f"s_cbranch_vccz L_gotB{tag}", "branch")
        a.raw(f"s_add_u32 s{IT}, s{IT}, 1", "salu"); a.raw(f"s_cmp_lt_u32 s{IT}, 50000", "salu")
        a.raw(f"s_cbranch_scc1 L_poll{tag}", "branch")
        a.raw(f"s_branch L_pend{tag}", "branch")
        a.label(f"L_gotA{tag}"); acc(TDA); a.raw(f"s_branch L_pend{tag}", "branch")
        a.label(f"L_gotB{tag}"); acc(TDB); a.raw(f"s_branch L_pend{tag}", "branch")
        a.label(f"L_done{tag}")
        cS = sr(CH)
        a.s("s_lshr_b32", T2, cS, 3); a.s("s_lshl_b32", T2, T2, 7)
        a.s("s_bfe_u32", T3, cS, "0x10002"); a.s("s_lshl_b32", T3, T3, 6); a.s("s_add_u32", T2, T2, T3)
        a.s("s_and_b32", T3, cS, 1); a.s("s_lshl_b32", T3, T3, 5); a.s("s_add_u32", T2, T2, T3)
        a.s("s_bfe_u32", T3, cS, "0x10001"); a.s("s_mul_i32", T3, T3, 32 * 1280); a.s("s_add_u32", T2, T2, T3)
        a.raw("s_nop 15", "other"); a.raw("s_nop 7", "other")
        PK = V_T + 8
        for k in range(4): a.raw(f"v_cvt_pk_bf16_f32 v{PK+k}, v{DD+2*k}, v{DD+2*k+1}", "valu")
        a.raw(f"buffer_store_dwordx4 v[{PK}:{PK+3}], v39, {srd(S_OUT)}, {T2} offen", "vmem_store")
        a.raw("s_nop 1", "other")
    CHX, DOX, CKX, CHY, DOY, CKY = 86, 87, 88, 89, 90, 91
    def tail4_setup():
        if opt.get("cmap", 1) == 0:
            a.s("s_mul_i32", T0, sr(S_J), 5); a.s("s_add_u32", T1, T0, sr(S_W)); a.s("s_add_u32", T0, T0, 4)
        else:
            a.s("s_lshl_b32", T1, sr(S_W), 4); a.s("s_add_u32", T1, T1, sr(S_J)); a.s("s_add_u32", T0, sr(S_J), 64)
        chunk_setup(T1, CHX, DOX, CKX); chunk_setup(T0, CHY, DOY, CKY)
    def tail4_setup2():
        aid_build2()
        a.v("v_and_b32", vr(36), 31, "v0"); a.v("v_mul_u32_u24", vr(36), 1280, vr(36))
        a.v("v_bfe_u32", vr(37), "v0", 5, 1); a.v("v_lshlrev_b32", vr(37), 4, vr(37))
        a.v("v_add_u32", vr(39), vr(36), vr(37))
        a.v("v_and_b32", vr(38), 15, "v0"); a.v("v_lshlrev_b32", vr(38), 2, vr(38))
    def hint_store():
        a.s("s_lshl_b32", T0, sr(S_J), 2); a.s("s_lshl_b32", T1, sr(S_W), 6); a.s("s_add_u32", T0, T0, T1); a.s("s_add_u32", T0, T0, 327680)
        a.v("v_mov_b32", vr(32), sr(S_NONCE)); a.v("v_mov_b32", vr(33), 0)
        a.bstore("buffer_store_dword", vr(32), vr(33), srd(S_F), T0, 0, "sc1")
    def tail4(last_side, st_):
        for f in last_side: f()
        st_("endop")
        if opt.get("gate"):
            a.raw(f"s_bfe_u32 s{SC}, s{CHX}, 0x20001", "salu"); a.raw(f"s_lshl_b32 s{SC}, s{SC}, 6", "salu")
            a.raw(f"s_add_u32 s{SC}, s{SC}, 327680", "salu"); a.raw(f"s_mov_b32 s{IT}, 0", "salu")
            def hl(r): a.raw(f"buffer_load_dword v{r}, v38, {srd(S_F)}, s{SC} offen sc1", "vmem_load")
            def hc(r):
                a.raw("s_waitcnt vmcnt(1)", "wait")
                a.raw(f"v_cmp_eq_u32 vcc, s{S_NONCE}, v{r}", "valu"); a.raw("s_nop 1", "other")
                a.raw(f"s_cmp_eq_u32 vcc_lo, -1", "salu"); a.raw(f"s_cbranch_scc1 L_gate", "branch")
            hl(TCA)
            a.label("L_gp")
            hl(TCB); hc(TCA); hl(TCA); hc(TCB)
            a.raw(f"s_add_u32 s{IT}, s{IT}, 1", "salu"); a.raw(f"s_cmp_lt_u32 s{IT}, 50000", "salu")
            a.raw("s_cbranch_scc1 L_gp", "branch")
            a.label("L_gate")
        a.s("s_and_b32", T0, sr(S_J), 3); a.s("s_cmp_eq_u32", T0, sr(S_W)); a.raw("s_cbranch_scc1 L_two", "branch")
        chunk_loads(128, 192, DOX, CKX)
        chunk_process("X1", 128, 192, CHX, DOX, CKX, 0)
        a.raw("s_branch L_fin", "branch")
        a.label("L_two")
        chunk_loads(128, 192, DOX, CKX); chunk_loads(56, 208, DOY, CKY)
        chunk_process("X2", 128, 192, CHX, DOX, CKX, 32)
        chunk_process("Y2", 56, 208, CHY, DOY, CKY, 0)
        a.label("L_fin")
        st_("red")
    def tail5p(last_side, st_):
        VFB = 252
        a.s("s_lshl_b32", T0, sr(S_J), 1)
        a.s("s_add_u32", T1, sr(S_J), 32)
        a.s("s_cmp_eq_u32", sr(S_W), 1); a.s("s_cselect_b32", T1, T1, T0)
        a.s("s_add_u32", T0, T0, sr(S_W)); a.s("s_add_u32", T0, T0, 46)
        a.s("s_cmp_ge_u32", sr(S_W), 2); a.s("s_cselect_b32", T0, T0, T1)
        chunk_addr(T0, 0); a.s("s_mov_b32", sr(S_CO), T2)
        a.s("s_bfe_u32", T0, sr(S_CH), "0x20001"); a.s("s_lshl_b32", T0, T0, 7)
        a.s("s_cmp_ge_u32", sr(S_W), 2); a.s("s_cselect_b32", T1, 512, 0); a.s("s_add_u32", sr(S_CP), T0, T1)
        a.v("v_lshrrev_b32", vr(VFO), 1, vr(V_L16)); a.v("v_and_b32", vr(VFO), 127, vr(VFO))
        for f in last_side: f()
        st_("endop")
        def pl(r): return a.bload("buffer_load_dwordx2", rs("v", r, 2), vr(VFO), srd(S_F), sr(S_CP), 0, "sc1")
        pl(VFA)
        a.wait_vm(ptok_ref[0][9]); flag_store(1)
        st_("stored")
        pl(VFB)
        a.s("s_mov_b32", sr(S_SOFF), 0)
        a.label("L_pp")
        a.raw("s_waitcnt vmcnt(1)", "wait"); flags_ok(VFA, "L_ppA"); a.raw("s_branch L_ppok", "branch")
        a.label("L_ppA")
        a.raw(f"buffer_load_dwordx2 v[{VFA}:{VFA+1}], v{VFO}, {srd(S_F)}, s{S_CP} offen sc1", "vmem_load")
        a.raw("s_waitcnt vmcnt(1)", "wait"); flags_ok(VFB, "L_ppB"); a.raw("s_branch L_ppok", "branch")
        a.label("L_ppB")
        a.raw(f"buffer_load_dwordx2 v[{VFB}:{VFB+1}], v{VFO}, {srd(S_F)}, s{S_CP} offen sc1", "vmem_load")
        a.s("s_add_u32", sr(S_SOFF), sr(S_SOFF), 1); a.s("s_cmp_lt_u32", sr(S_SOFF), 100000); a.raw("s_cbranch_scc1 L_pp", "branch")
        a.label("L_ppok")
        a.s("s_mov_b32", T2, sr(S_CO)); red_loads(128)
        a.s("s_cmp_eq_u32", sr(S_W), 0); a.raw("s_cbranch_scc1 L_tA2", "branch")
        red_sum_store(128, 0)
        a.raw("s_branch L_fin", "branch")
        a.label("L_tA2")
        a.s("s_add_u32", T2, sr(S_CO), 1024); red_loads(56)
        red_sum_store(128, 16)
        a.s("s_add_u32", sr(S_CH), sr(S_CH), 1)
        red_sum_store(56, 1)
        a.label("L_fin")
        st_("red")
    def tail5(last_side, st_):
        if opt.get("ppoll"): return tail5p(last_side, st_)
        for f in last_side: f()
        st_("endop")
        if not opt.get("flagA_at"): a.wait_vm(ptok_ref[0][5]); flag_store(0)
        st_("flagA")
        if opt.get("tail5b"):
            if not opt.get("flagB1_at"): a.wait_vm(ptok_ref[0][7]); flag_store(1)
            a.wait_vm(ptok_ref[0][9]); flag_store(2)
        else:
            a.wait_vm(ptok_ref[0][9]); flag_store(1)
        st_("stored")
        a.s("s_cmp_ge_u32", sr(S_W), 2); a.raw("s_cbranch_scc1 L_tB", "branch")
        a.s("s_cmp_eq_u32", sr(S_W), 1); a.raw("s_cbranch_scc1 L_tA1", "branch")
        a.s("s_lshl_b32", T0, sr(S_J), 1); chunk_addr(T0, 0); a.s("s_mov_b32", sr(S_CO), T2)
        poll(0, "A2")
        a.s("s_mov_b32", T2, sr(S_CO)); red_loads(128)
        a.s("s_add_u32", T2, sr(S_CO), 1024); red_loads(56)
        red_sum_store(128, 16)
        a.s("s_add_u32", sr(S_CH), sr(S_CH), 1)
        red_sum_store(56, 1)
        a.raw("s_branch L_fin", "branch")
        a.label("L_tA1")
        a.s("s_add_u32", T0, sr(S_J), 32); chunk_addr(T0, 0); a.s("s_mov_b32", sr(S_CO), T2)
        poll(0, "A1")
        a.s("s_mov_b32", T2, sr(S_CO)); red_loads(); red_sum_store()
        a.raw("s_branch L_fin", "branch")
        a.label("L_tB")
        if opt.get("tail5b"):
            a.s("s_lshl_b32", T0, sr(S_W), 4); a.s("s_add_u32", T0, T0, sr(S_J)); a.s("s_add_u32", T0, T0, 16)
        else:
            a.s("s_lshl_b32", T0, sr(S_J), 1); a.s("s_add_u32", T0, T0, sr(S_W)); a.s("s_add_u32", T0, T0, 46)
        chunk_addr(T0, 0); a.s("s_mov_b32", sr(S_CO), T2)
        poll(None if opt.get("tail5b") else 1, "B")
        a.s("s_mov_b32", T2, sr(S_CO)); red_loads(); red_sum_store()
        a.label("L_fin")
        st_("red")
    def tail(last_side, st_):
        if opt["tail4"]: return tail4(last_side, st_)
        if opt.get("tail5"): return tail5(last_side, st_)
        for f in last_side: f()
        st_("endop")
        a.s("s_lshl_b32", sr(S_GW), sr(S_J), 2); a.s("s_add_u32", sr(S_GW), sr(S_GW), sr(S_W))
        a.wait_vm(ptok_ref[0][4]); flag_store(0)
        st_("flagA")
        a.wait_vm(ptok_ref[0][9]); flag_store(1)
        st_("stored")
        a.s("s_cmp_ge_u32", sr(S_GW), 40); a.raw("s_cbranch_scc1 L_noA", "branch")
        chunk_addr(sr(S_GW), 0)
        a.s("s_mov_b32", sr(S_CO), T2)
        poll(0, "A")
        a.s("s_mov_b32", T2, sr(S_CO))
        red_loads(); red_sum_store()
        a.label("L_noA")
        st_("redA")
        a.s("s_cmp_lt_u32", sr(S_GW), 24); a.raw("s_cbranch_scc1 L_fin", "branch")
        a.s("s_sub_u32", T0, 63, sr(S_GW))
        chunk_addr(T0, 5)
        a.s("s_mov_b32", sr(S_CO), T2)
        poll(1, "B")
        st_("synced")
        a.s("s_mov_b32", T2, sr(S_CO))
        red_loads(); red_sum_store()
        a.label("L_fin")
    S_CO = 80
    ptok_ref = [None]
    program(0)
    if stamps:
        a.raw("s_waitcnt vmcnt(0)", "wait"); stamp("end")
        a.s("s_lshl_b32", T0, "s2", 2); a.s("s_add_u32", T0, T0, sr(S_W)); a.s("s_lshl_b32", T0, T0, 9)
        a.s("s_add_u32", sr(S_F), "s18", 0x4000000); a.s("s_addc_u32", sr(S_F + 1), "s19", 0); a.s("s_and_b32", sr(S_F + 1), sr(S_F + 1), "0xffff")
        a.s("s_mov_b32", sr(S_F + 2), 1024 * 512)
        a.v("v_and_b32", vt[0], 63, "v0"); a.v("v_lshlrev_b32", vt[0], 2, vt[0]); a.nop(4)
        a.raw(f"buffer_store_dword v{V_ST}, {vt[0]}, {srd(S_F)}, {T0} offen", "vmem_store")
        a.raw(f"buffer_store_dword v{V_ST+1}, {vt[0]}, {srd(S_F)}, {T0} offen offset:256", "vmem_store")
    a.label("L_end"); a.raw("s_endpgm", "other"); a.label("L_codeend")
    a.finalize()
    hdr = [f"; @launch grid=(256,1,1) block=(256,1,1) lds=163840", '.amdgcn_target "amdgcn-amd-amdhsa--gfx950"', ".text",
           f".set CPF_LINES, ((L_codeend-{KN})/128+32)/32", f".globl {KN}", ".p2align 8", f".type {KN},@function", f"{KN}:"]
    ftr = ['.section .rodata,"a"', ".p2align 6", f".amdhsa_kernel {KN}",
           "  .amdhsa_next_free_vgpr 512", "  .amdhsa_next_free_sgpr 100", "  .amdhsa_accum_offset 256",
           "  .amdhsa_group_segment_fixed_size 0", "  .amdhsa_kernarg_size 64", "  .amdhsa_user_sgpr_count 2",
           "  .amdhsa_user_sgpr_kernarg_segment_ptr 1", "  .amdhsa_system_sgpr_workgroup_id_x 1", ".end_amdhsa_kernel"]
    txt = "\n".join(l.strip() if not l.startswith(";") else l for l in a.text().splitlines() if not l.strip().startswith("; ----")) + "\n"
    open(name, "w").write("\n".join(hdr) + "\n" + txt + "\n".join(ftr) + "\n")
    print(name, "instrs:", len(a.ins), "steps:", NS, "stamps:", stamp_n[0])
    return stamp_names

if __name__ == "__main__":
    XO = ["x.0", "wq0.0", "x.1", "wq0.1"] + [f"x.{t}" for t in range(2, 10)]
    base = dict(xall=True, early={}, init_order=XO, ninit=4, nfirst=2, front=True, fixed={"k0.0": 6, "k0.1": 8}, PF=4)
    import variants11
    variants11.run(gen, base)
```
